```python
import torch

def _softmax(x, axis=-1):
    return torch.softmax(x, dim=axis)
def _gelu(x):
    return torch.nn.functional.gelu(x, approximate="tanh")
def _silu(x):
    return torch.nn.functional.silu(x)
def _sigmoid(x):
    return torch.sigmoid(x)
def _layernorm(x, axis=-1, eps=1e-5):
    m = x.mean(dim=axis, keepdim=True)
    v = x.var(dim=axis, keepdim=True, unbiased=False)
    return (x - m) / torch.sqrt(v + eps)
def _scatter_add(tgt, idx, src, axis=0):
    return tgt.clone().index_add_(axis, idx, src)
def _segment_sum(src, seg, n):
    out = torch.zeros((n,) + src.shape[1:], dtype=src.dtype)
    return out.index_add_(0, seg, src)
def _pad(x, pw):
    flat = tuple(v for pair in reversed(pw) for v in pair)
    return torch.nn.functional.pad(x, flat)

kernel_name = 'interleave_layers__sliding_block_cached__sliding_block_cached__decode'

def setup_inputs():

    _w = (lambda a: (lambda t: t.to(torch.bfloat16) if t.is_floating_point() else t)(torch.as_tensor(a)))
    def _A_setup():
        B, Sq, D = 1, 1, 1024
        Hq, Hkv, Sk, Dh = 32, 4, 65536, 128
        assert Hq % Hkv == 0, (Hq, Hkv)
        return {
            "x": _w((lambda *s: torch.randn(*s, dtype=torch.bfloat16) * 0.05)(B, Sq, D)),
            "k_cache": _w((lambda *s: torch.randn(*s, dtype=torch.bfloat16) * 0.8)(B, Hkv, Sk, Dh)),
            "v_cache": _w((lambda *s: torch.randn(*s, dtype=torch.bfloat16) * 3.2)(B, Hkv, Sk, Dh)),
            "wq": _w((lambda *s: torch.randn(*s, dtype=torch.bfloat16) * 0.8)(D, Hq * Dh) * (D ** -0.5)),
            "wo": _w((lambda *s: torch.randn(*s, dtype=torch.bfloat16) * 3.2)(Hq * Dh, D) * ((Hq * Dh) ** -0.5)),
        }
    _A_in = _A_setup()

    def _B_setup():
        B, Sq, D = 1, 1, 1024
        Hq, Hkv, Sk, Dh = 32, 4, 65536, 128
        assert Hq % Hkv == 0, (Hq, Hkv)
        return {
            "x": _w((lambda *s: torch.randn(*s, dtype=torch.bfloat16) * 0.05)(B, Sq, D)),
            "k_cache": _w((lambda *s: torch.randn(*s, dtype=torch.bfloat16) * 1.6)(B, Hkv, Sk, Dh)),
            "v_cache": _w((lambda *s: torch.randn(*s, dtype=torch.bfloat16) * 1.6)(B, Hkv, Sk, Dh)),
            "wq": _w((lambda *s: torch.randn(*s, dtype=torch.bfloat16) * 1.6)(D, Hq * Dh) * (D ** -0.5)),
            "wo": _w((lambda *s: torch.randn(*s, dtype=torch.bfloat16) * 1.6)(Hq * Dh, D) * ((Hq * Dh) ** -0.5)),
        }
    _B_in = _B_setup()

    return {
        "A_x": _A_in["x"],
        "A_k_cache": _A_in["k_cache"],
        "A_v_cache": _A_in["v_cache"],
        "A_wq": _A_in["wq"],
        "A_wo": _A_in["wo"],
        "B_x": _B_in["x"],
        "B_k_cache": _B_in["k_cache"],
        "B_v_cache": _B_in["v_cache"],
        "B_wq": _B_in["wq"],
        "B_wo": _B_in["wo"],
    }

def reference(A_x, A_k_cache, A_v_cache, A_wq, A_wo, B_x, B_k_cache, B_v_cache, B_wq, B_wo):
    def _A_ref(x, k_cache, v_cache, wq, wo):
        B, Sq, D = x.shape
        Hq, Dh = 32, 128
        Hkv, Sk = k_cache.shape[1], k_cache.shape[2]
        W = min(4096, max(256, Sk // 4))
        rep = Hq // Hkv
        q = (lambda x, *d: x.permute(*d))((x @ wq).reshape(B, Sq, Hq, Dh), 0, 2, 1, 3)
        k = (lambda x, n, axis: torch.repeat_interleave(x, n, dim=axis))(k_cache[:, :, Sk - W:, :], rep, axis=1)
        v = (lambda x, n, axis: torch.repeat_interleave(x, n, dim=axis))(v_cache[:, :, Sk - W:, :], rep, axis=1)
        scores = torch.einsum("bhqd,bhkd->bhqk", q, k) * (Dh ** -0.5)
        p = _softmax(scores, axis=-1)
        o = torch.einsum("bhqk,bhkd->bhqd", p, v)
        return (lambda x, *d: x.permute(*d))(o, 0, 2, 1, 3).reshape(B, Sq, Hq * Dh) @ wo

    def _B_ref(x, k_cache, v_cache, wq, wo):
        B, Sq, D = x.shape
        Hq, Dh = 32, 128
        Hkv, Sk = k_cache.shape[1], k_cache.shape[2]
        W = min(4096, max(256, Sk // 4))
        rep = Hq // Hkv
        q = (lambda x, *d: x.permute(*d))((x @ wq).reshape(B, Sq, Hq, Dh), 0, 2, 1, 3)
        k = (lambda x, n, axis: torch.repeat_interleave(x, n, dim=axis))(k_cache[:, :, Sk - W:, :], rep, axis=1)
        v = (lambda x, n, axis: torch.repeat_interleave(x, n, dim=axis))(v_cache[:, :, Sk - W:, :], rep, axis=1)
        scores = torch.einsum("bhqd,bhkd->bhqk", q, k) * (Dh ** -0.5)
        p = _softmax(scores, axis=-1)
        o = torch.einsum("bhqk,bhkd->bhqd", p, v)
        return (lambda x, *d: x.permute(*d))(o, 0, 2, 1, 3).reshape(B, Sq, Hq * Dh) @ wo

    x = A_x
    x = x + _A_ref(_layernorm(x, axis=-1), A_k_cache, A_v_cache, A_wq, A_wo)
    x = x + _B_ref(_layernorm(x, axis=-1), B_k_cache, B_v_cache, B_wq, B_wo)
    x = x + _A_ref(_layernorm(x, axis=-1), A_k_cache, A_v_cache, A_wq, A_wo)
    x = x + _B_ref(_layernorm(x, axis=-1), B_k_cache, B_v_cache, B_wq, B_wo)
    return x
```

```python
import re
TRANS = ('v_exp_','v_log_','v_rcp_','v_rsq_','v_sqrt_','v_sin_','v_cos_')
def regs(tok):
    tok = tok.strip()
    tok = tok.lstrip('-').strip('|')
    m = re.fullmatch(r'([vas])(\d+)', tok)
    if m: return {(m.group(1), int(m.group(2)))}
    m = re.fullmatch(r'([vas])\[(\d+):(\d+)\]', tok)
    if m: return {(m.group(1), i) for i in range(int(m.group(2)), int(m.group(3))+1)}
    if tok in ('vcc','vcc_lo','vcc_hi'): return {('s','vcc')}
    if tok in ('exec','exec_lo','exec_hi'): return {('s','exec')}
    if tok == 'm0': return {('s','m0')}
    return set()
class I:
    def __init__(self, line):
        self.line = line
        s = line.split(';')[0].strip()
        self.label = s[:-1] if s.endswith(':') else None
        self.dir = s.startswith('.') and not self.label
        self.op = None; self.w = set(); self.r = set(); self.cls = None; self.states = 0
        self.target = None; self.srcC = set(); self.ab = set()
        if not s or self.label or self.dir: return
        p = s.split(None, 1); op = p[0]; self.op = op
        rest = p[1] if len(p) > 1 else ''
        ops = [o.strip() for o in re.split(r',(?![^\[]*\])(?![^(]*\))', rest)] if rest else []
        mods = ''
        if ops:
            q = ops[-1].split(None, 1); ops[-1] = q[0]; mods = q[1] if len(q) > 1 else ''
        self.states = 1
        R = [regs(o) for o in ops]
        allr = set().union(*R) if R else set()
        self.dpp = '_dpp' in op or 'row_' in mods or 'quad_perm' in mods
        if op == 's_nop': self.cls = 'nop'; self.states = int(ops[0], 0)+1
        elif op.startswith('s_cbranch') or op == 's_branch': self.cls = 'br'; self.target = ops[0]
        elif op.startswith(('s_load','s_buffer_load','s_memtime','s_memrealtime')):
            self.cls = 'smem'; self.w = R[0]; self.r = set().union(*R[1:]) if len(R) > 1 else set()
        elif op.startswith('s_'):
            self.cls = 'salu'
            if op.startswith(('s_cmp','s_waitcnt','s_barrier','s_setprio','s_endpgm','s_bitcmp','s_sleep')): self.r = allr
            else: self.w = R[0]; self.r = set().union(*R[1:]) if len(R) > 1 else set()
        elif op.startswith(('v_mfma','v_smfmac')):
            self.cls = 'mfma'; self.w = R[0]
            if op.startswith('v_smfmac'): self.srcC = R[0]; self.ab = R[1] | R[2] | R[3]
            else: self.srcC = R[3]; self.ab = R[1] | R[2]
            self.r = self.srcC | self.ab
            self.passes = 8 if '32x32' in op else (2 if '4x4x4' in op else 4)
        elif op.startswith('v_'):
            self.cls = 'valu'
            self.trans = op.startswith(TRANS); self.dot = op.startswith('v_dot')
            self.perml = op.startswith('v_permlane'); self.rdl = op.startswith(('v_readlane','v_readfirstlane'))
            self.w = set(R[0]); self.r = set().union(*R[1:]) if len(R) > 1 else set()
            if self.perml and 'swap' in op: self.w = R[0] | R[1]; self.r = R[0] | R[1]
            if op.startswith(('v_dot2c','v_fmac','v_mac','v_writelane')) or self.dpp: self.r |= R[0]
            if op.startswith('v_cndmask') and len(ops) == 3: self.r |= {('s','vcc')}
            assert not op.startswith('v_cmpx'), 'v_cmpx unsupported'
            if '_co_' in op: self.w |= R[1]; self.r = set().union(*R[2:])
            if self.dot:
                self.srcC = R[3] if len(R) > 3 else R[0]; self.ab = R[1] | R[2]
        elif op.startswith(('buffer_','global_')):
            self.cls = 'vmem'; self.lds = bool(re.search(r'\blds\b', mods))
            ld = '_load' in op
            if op.startswith('buffer_'):
                if ld and not self.lds: self.w = R[0]; self.r = set().union(*R[1:])
                else: self.r = allr
                self.wide = R[0] if (not ld and op.endswith(('x3','x4'))) else set()
            else:
                if ld: self.w = R[0]; self.r = set().union(*R[1:])
                else: self.r = allr
                self.wide = R[1] if (not ld and op.endswith(('x3','x4'))) else set()
            if 'd16' in op and ld: self.r |= self.w
        elif op.startswith('ds_'):
            self.cls = 'ds'
            if op.startswith('ds_read'): self.w = R[0]; self.r = set().union(*R[1:])
            else: self.r = allr
        else: raise ValueError('unknown op: ' + line)
def vec(S): return {x for x in S if x[0] in 'va'}
def sca(S): return {x for x in S if x[0] == 's'}
def need(p, c):
    n = 0
    if p.cls == 'valu':
        vw = vec(p.w); sw = sca(p.w)
        if c.cls == 'valu':
            if (c.dpp or c.perml) and vw & c.r: n = max(n, 2)
            if c.rdl and vw & c.r: n = max(n, 1)
            if p.trans and not c.trans and vw & c.r: n = max(n, 1)
            if sw & c.r: n = max(n, 4 if c.op.startswith(('v_readlane','v_writelane')) else 2)
        if c.cls == 'mfma' and vw & c.r: n = max(n, 2)
        if c.cls == 'vmem' and sw & c.r: n = max(n, 5)
        if p.dot and c.cls in ('valu','mfma','vmem','ds'):
            if c.op == p.op:
                if vw & c.ab: n = max(n, 3)
            elif vw & (c.r | c.w): n = max(n, 3)
    if p.cls == 'mfma':
        big = {2:5, 4:8, 8:12}[p.passes]
        if c.cls == 'mfma':
            if p.w & c.ab: n = max(n, big)
            if p.w & c.srcC and not (p.w == c.srcC and p.passes == c.passes): n = max(n, {2:4,4:6,8:10}[p.passes])
            if p.w == c.srcC and p.passes == 2: n = max(n, 2)
        elif c.cls in ('valu','vmem','ds'):
            if p.w & (c.r | c.w): n = max(n, big)
            if c.cls == 'valu' and p.srcC & c.w: n = max(n, {2:1,4:3,8:7}[p.passes])
    if p.cls == 'salu' and ('s','m0') in p.w and c.cls == 'vmem' and c.lds: n = max(n, 1)
    if p.cls == 'vmem' and p.wide and c.cls in ('valu','vmem','ds','mfma') and p.wide & c.w: n = max(n, 2 if c.cls == 'valu' else 1)
    return n
WIN = 13
def fix(lines):
    L = [I(l) for l in lines]
    added = 0
    while True:
        out = []; hist = []
        for x in L:
            if x.op is None: out.append(x); continue
            d = 0; n = 0
            for p in reversed(hist):
                n = max(n, need(p, x) - d); d += p.states
                if d >= WIN: break
            if n > 0:
                nop = I('    s_nop %d' % (n-1)); out.append(nop); hist.append(nop); added += 1
            out.append(x); hist.append(x)
            if x.op in ('s_branch','s_endpgm'): hist = []
        L = out
        lab = {x.label: k for k, x in enumerate(L) if x.label}
        bad = None
        for k, x in enumerate(L):
            if x.cls != 'br': continue
            pre = []; d = 0; j = k
            while j >= 0 and d < WIN:
                y = L[j]
                if y.op:
                    if j < k and y.op in ('s_branch','s_endpgm'): break
                    pre.append(y); d += y.states
                j -= 1
            j = lab[x.target]; dd = 0
            while j < len(L) and dd < WIN:
                y = L[j]
                if y.op:
                    d = dd
                    for p in pre:
                        if need(p, y) - d > 0: bad = (lab[x.target], need(p, y) - d); break
                        d += p.states
                    if bad: break
                    dd += y.states
                    if y.op in ('s_branch','s_endpgm'): break
                j += 1
            if bad: break
        if not bad: break
        L.insert(bad[0]+1, I('    s_nop %d' % (bad[1]-1))); added += 1
    return [x.line for x in L], added
```

```python
import sys, os
from asmlib import *
import hazard
NAME = 'interleave_layers__sliding_block_cached__sliding_block_cached__decode_kernel'

DEF = dict(stamps=False, WA=4, WB=4, copy=0, budget=1 << 20)

FS, FL, FM, MX = 0, 16, 32, 128
XB, ONES, OB = 512, 1024, 1536
QB, PB = 2048, 4352
LW, LK, LV = 8192, 73728, 106496
LDS = 139264
RDY, CROSS, GRP = 0x8000, 0x20000, 0x200000
USE = 0x18000
oST, oM, oL, oCO, oCS = 0x4000, 0x4400, 0x4800, 0x8000, 0x30000
DBG = 0x100000

def gen(**kw):
    P = dict(DEF); P.update(kw)
    a = Asm()
    ool = Asm()
    cnt = [0]
    def lab(p):
        cnt[0] += 1
        return f'{p}_{cnt[0]}'
    sW = 's3'; WS = 's[4:7]'; XS = 's[8:11]'; OS = 's[12:15]'
    sA, sRl, sRs, sBQs, sSTs, sSTl, sBQl, sMs, sMl, sCOs, sCOs2, sCOl, sCOl2, sABs, sCSl = [f's{i}' for i in range(16, 31)]
    sMode, sBud, sU, sPub, sSet = 's31', 's32', 's33', 's34', 's35'
    sLo, sHi, sOne2, sXo = 's36', 's37', 's38', 's39'
    mFull, mLo32, mBQ, mM3, m5555, mL63, mB4, mOdd, mT = [f's[{i}:{i+1}]' for i in range(40, 58, 2)]
    sT0, sT1, sT2, sT3 = 's58', 's59', 's60', 's61'
    sTag, sDbg = 's62', 's63'
    sJ, sG, sI, sRb, sCb = 's96', 's97', 's98', 's99', 's100'
    (vG, vRl, vRs, vXw, vXr, vIdx, vBQs, vSTl, vBQl, vQw, vQr, vMXw, vMXr, vPw, vMs, vLs, vCOs, vMl, vABs,
     vZ, vFw, vSeq) = [f'v{i}' for i in range(22)]
    CS = 22
    def vr(i, n=1): return f'v{i}' if n == 1 else f'v[{i}:{i+n-1}]'
    def ar(i, n=1): return f'a{i}' if n == 1 else f'a[{i}:{i+n-1}]'
    def set64(pair, val):
        i = int(pair[2:pair.index(':')])
        a(f's_mov_b32 s{i}, {hex(val & 0xffffffff)}')
        a(f's_mov_b32 s{i+1}, {hex(val >> 32)}')
    def stamp(k):
        if P['stamps']: a(f's_memtime s[{64+2*k}:{65+2*k}]')
    def retry(target):
        r = lab('RT')
        ool.label(r)
        ool(f's_sub_u32 {sBud}, {sBud}, 1\ns_cbranch_scc0 {target}\ns_branch FAIL')
        return r
    def gstore(instrs):
        s, b = lab('SS'), lab('SB')
        a(f's_cmp_eq_u32 {sMode}, 1\ns_cbranch_scc1 {s}')
        for x in instrs: a(x)
        a.label(b)
        ool.label(s)
        for x in instrs: ool(x + ' sc1')
        ool(f's_branch {b}')
    def flag():
        a(f'ds_write_b32 {vFw}, {vSeq}')
    def sync(reads, F, shadow=None):
        L = lab('SY'); C = lab('SC')
        def rd(o):
            o(f'ds_read_b128 {vr(F,4)}, {vZ} offset:{FS}')
            for r in reads: o(r)
        rd(a)
        if shadow: shadow()
        a.label(C)
        a(f's_waitcnt lgkmcnt({len(reads)})')
        a(f'v_min3_u32 v{F}, v{F}, v{F+1}, v{F+2}')
        a(f'v_min_u32 v{F}, v{F}, v{F+3}')
        a(f'v_cmp_gt_u32 vcc, {vSeq}, v{F}')
        a(f's_cbranch_vccnz {L}')
        a(f'v_add_u32 {vSeq}, 1, {vSeq}')
        ool.label(L)
        rd(ool)
        ool(f's_sub_u32 {sBud}, {sBud}, 1\ns_cbranch_scc0 {C}\ns_branch FAIL')
    def waitload(n, F):
        L = lab('WL')
        a.label(L)
        a(f'ds_read_b128 {vr(F,4)}, {vZ} offset:{FL}')
        a('s_waitcnt lgkmcnt(0)')
        a(f'v_min3_i32 v{F}, v{F}, v{F+1}, v{F+2}')
        a(f'v_min_i32 v{F}, v{F}, v{F+3}')
        a(f'v_cmp_gt_i32 vcc, {n}, v{F}')
        a(f's_cbranch_vccnz {retry(L)}')
    def smf(D, A, B):
        a(f'v_smfmac_f32_16x16x64_bf16 {vr(D,4)}, {vr(A,4)}, {ar(B,8)}, {vIdx}')
    def zero(D, n):
        for i in range(n): a(f'v_mov_b32 v{D+i}, 0')
    def dpp(op, d, s, ctl, rm='0xf', bm='0xf'):
        a(f'{op}_dpp v{d}, v{s}, v{s} {ctl} row_mask:{rm} bank_mask:{bm}')
    def traddr(t, base):
        a(f'''
        v_mbcnt_lo_u32_b32 v{t+2}, -1, 0
        v_mbcnt_hi_u32_b32 v{t+2}, -1, v{t+2}
        v_bfe_u32 v{t+3}, v{t+2}, 2, 1          ; kk&1
        v_bfe_u32 v{t+4}, v{t+2}, 3, 1          ; kk>>1
        v_lshrrev_b32 v{t+5}, 4, v{t+2}         ; g
        v_lshlrev_b32 v{t}, 4, v{t+3}
        v_lshl_add_u32 v{t}, v{t+5}, 2, v{t}
        v_add_u32 v{t}, v{t}, v{t+4}            ; row
        v_lshlrev_b32 v{t}, 8, v{t}
        v_and_b32 v{t+5}, 1, v{t+5}
        v_lshl_or_b32 v{t+4}, v{t+5}, 1, v{t+4}
        v_lshl_or_b32 v{t+4}, v{t+3}, 2, v{t+4} ; f
        s_lshl_b32 {sT0}, {sW}, 1
        v_xor_b32 v{t+4}, {sT0}, v{t+4}
        v_lshl_add_u32 v{t}, v{t+4}, 5, v{t}
        v_and_b32 v{t+2}, 3, v{t+2}
        v_lshl_add_u32 v{t}, v{t+2}, 3, v{t}
        v_add_u32 v{t}, {base}, v{t}
        v_xor_b32 v{t+1}, 32, v{t}
        ''')
    def trq(t, kq, abase):
        for b in range(2):
            for tau in range(4):
                a(f'ds_read_b64_tr_b16 {ar(abase + 16*kq + 8*b + 2*tau, 2)}, v{t+b} offset:{kq*16384 + (tau>>1)*8192 + (tau&1)*512}')
    def butterfly(A):
        for k in range(4): a(f'v_permlane32_swap_b32 v{A+k}, v{A+4+k}')
        a(f'v_pk_add_f32 {vr(A,2)}, {vr(A,2)}, {vr(A+4,2)}')
        a(f'v_pk_add_f32 {vr(A+2,2)}, {vr(A+2,2)}, {vr(A+6,2)}')
        for k in range(2): a(f'v_permlane16_swap_b32 v{A+k}, v{A+2+k}')
        a(f'v_pk_add_f32 {vr(A,2)}, {vr(A,2)}, {vr(A+2,2)}')
        dpp('v_add_f32', A, A, 'row_ror:8'); dpp('v_add_f32', A+1, A+1, 'row_ror:8')
    def dumpstamps(slot):
        if not P['stamps']: return
        a('s_waitcnt lgkmcnt(0)')
        a('v_mov_b32 v26, 0')
        for k in range(16): a(f'v_writelane_b32 v26, s{64+2*k}, {k}')
        a('v_mbcnt_lo_u32_b32 v27, -1, 0\nv_mbcnt_hi_u32_b32 v27, -1, v27\nv_lshlrev_b32 v27, 2, v27')
        a(f's_lshl_b32 {sT0}, {slot}, 6\ns_add_u32 {sT0}, {sT0}, {sDbg}')
        a(f's_mov_b64 exec, 0xffff\nbuffer_store_dword v26, v27, {WS}, {sT0} offen\ns_mov_b64 exec, -1')

    a(f'''
    s_cmp_ge_u32 s2, 256
    s_cbranch_scc1 EXIT
    s_and_b32 {sSet}, s2, 1
    s_mul_i32 {sT0}, {sSet}, 40
    s_add_u32 {sT0}, {sT0}, 8
    s_load_dwordx8 s[84:91], s[0:1], {sT0}
    s_load_dwordx2 s[92:93], s[0:1], 96
    s_load_dwordx2 s[8:9], s[0:1], 0
    s_load_dwordx2 s[12:13], s[0:1], 80
    v_lshrrev_b32 v1, 6, v0
    v_and_b32 v63, 63, v0
    v_readfirstlane_b32 {sW}, v1
    v_mov_b32 {vZ}, 0
    v_lshlrev_b32 {vFw}, 2, v1
    ds_write_b32 {vFw}, {vZ}
    s_and_b32 {sJ}, s2, 7
    s_lshr_b32 {sG}, {sJ}, 1
    s_lshr_b32 {sI}, s2, 3
    s_lshr_b32 {sRb}, {sI}, 3
    s_and_b32 {sCb}, {sI}, 7
    s_mov_b32 {sBud}, {P['budget']}
    s_cmp_ge_u32 {sW}, 4
    s_cbranch_scc1 LOADER
    ''')
    if P['stamps']: a('s_memrealtime s[94:95]')
    stamp(0)
    L_, N_, G4, C_, B3, T = 'v63', 'v62', 'v61', 'v60', 'v59', 'v58'
    a(f'''
    ds_write_b32 {vZ}, {vZ} offset:{FM}
    s_mov_b32 {sLo}, 0x3f80
    s_mov_b32 {sHi}, 0x3f800000
    s_mov_b32 {sOne2}, 0x3f803f80
    v_mov_b32 v57, {sOne2}
    s_and_b32 {sT0}, {sW}, 1
    s_lshl_b32 {sT0}, {sT0}, 8
    v_lshl_add_u32 {T}, {L_}, 2, {sT0}
    ds_write_b32 {T}, v57 offset:{ONES}
    v_and_b32 {N_}, 15, {L_}
    v_lshrrev_b32 {G4}, 4, {L_}
    v_and_b32 {C_}, 7, {L_}
    v_bfe_u32 {B3}, {L_}, 3, 1
    v_lshrrev_b32 {T}, 3, {L_}
    v_lshlrev_b32 {vMl}, 4, {T}
    v_lshlrev_b32 {vG}, 8, {T}
    v_lshl_add_u32 {vG}, {C_}, 4, {vG}
    v_lshlrev_b32 {vRl}, 4, {C_}
    v_lshl_add_u32 {vRl}, {G4}, 2, {vRl}
    v_lshl_add_u32 {vRs}, {B3}, 13, {vRl}
    v_and_b32 {T}, 1, {G4}
    v_lshlrev_b32 {vABs}, 13, {T}
    v_lshl_add_u32 {vABs}, {N_}, 2, {vABs}
    s_waitcnt lgkmcnt(0)
    s_add_u32 s4, s92, 0x1fffff
    s_addc_u32 s5, s93, 0
    s_and_b32 s4, s4, 0xffe00000
    s_mov_b32 s6, 0x400000
    s_mov_b32 s7, 0x00020000
    s_mov_b32 s10, 2048
    s_mov_b32 s11, 0x00020000
    s_mov_b32 s14, 2048
    s_mov_b32 s15, 0x00020000
    ''')
    a(f'''
    s_lshl_b32 {sT3}, {sJ}, 18
    s_add_u32 {sT3}, {sT3}, {GRP}
    s_lshl_b32 {sT2}, {sSet}, 17
    s_add_u32 {sT2}, {sT2}, {CROSS}
    s_lshr_b32 {sT0}, {sCb}, 1
    s_lshl_b32 {sT0}, {sT0}, 14
    s_add_u32 {sABs}, {sT2}, {sT0}
    s_and_b32 {sT0}, {sCb}, 1
    s_lshl_b32 {sT0}, {sT0}, 12
    s_add_u32 {sABs}, {sABs}, {sT0}
    s_lshl_b32 {sT0}, {sG}, 2
    s_add_u32 {sT0}, {sT0}, {sRb}
    s_lshl_b32 {sT0}, {sT0}, 2
    s_add_u32 {sT0}, {sT0}, {sW}
    s_lshl_b32 {sT0}, {sT0}, 6
    s_add_u32 {sABs}, {sABs}, {sT0}
    s_lshl_b32 {sXo}, {sRb}, 2
    s_add_u32 {sXo}, {sXo}, {sW}
    s_lshl_b32 {sXo}, {sXo}, 7               ; rb*512 + w*128
    s_add_u32 {sRs}, {sT2}, {sXo}
    s_add_u32 {sRs}, {sRs}, 0x10000
    s_lshl_b32 {sT0}, {sRb}, 1
    s_cmp_eq_u32 {sT0}, {sCb}
    s_cselect_b32 {sPub}, 1, 0
    s_cmp_eq_u32 {sG}, 0
    s_cselect_b32 {sPub}, {sPub}, 0
    ''')
    a(f'''
    buffer_load_dword v56, off, {WS}, 0 sc1
    v_mov_b32 v52, -1
    v_mov_b32 v53, -1
    v_mov_b32 v54, -1
    v_mov_b32 v55, -1
    v_lshrrev_b32 v51, 5, {L_}
    v_lshl_add_u32 v50, v51, 18, {vABs}
    buffer_store_dword v52, v50, {WS}, {sABs} offen sc1
    v_mul_u32_u24 v50, {USE}, v51
    v_and_b32 v49, 31, {L_}
    v_lshl_add_u32 v50, v49, 4, v50
    s_lshl_b32 {sT0}, {sI}, 2
    s_add_u32 {sT0}, {sT0}, {sW}
    s_lshl_b32 {sT0}, {sT0}, 9
    s_add_u32 {sT0}, {sT0}, {sT3}
    s_add_u32 {sT0}, {sT0}, {oCO}
    buffer_store_dwordx4 v[52:55], v50, {WS}, {sT0} offen sc1
    v_lshlrev_b32 v50, 3, {L_}
    s_mul_i32 {sT0}, {sW}, {USE}
    s_lshl_b32 {sT1}, {sI}, 9
    s_cmp_lt_u32 {sW}, 3
    s_cbranch_scc1 CLR2
    v_and_b32 v50, 1, {G4}
    v_mul_u32_u24 v50, {USE}, v50
    v_lshl_add_u32 v50, {N_}, 3, v50
    s_mov_b32 {sT0}, {oST}
    s_lshl_b32 {sT1}, {sI}, 7
    ''')
    a.label('CLR2')
    a(f'''
    s_add_u32 {sT0}, {sT0}, {sT1}
    s_add_u32 {sT0}, {sT0}, {sT3}
    buffer_store_dwordx2 v[52:53], v50, {WS}, {sT0} offen sc1
    s_cmp_eq_u32 {sPub}, 0
    s_cbranch_scc1 CLR3
    s_add_u32 {sT0}, {sRs}, 0x40000
    buffer_store_dword v52, {vRs}, {WS}, {sRs} offen sc1
    buffer_store_dword v52, {vRs}, {WS}, {sT0} offen sc1
    ''')
    a.label('CLR3')
    a(f'''
    v_lshlrev_b32 v50, 5, {L_}
    v_and_b32 v49, 63, {vRl}
    v_lshrrev_b32 v49, 1, v49
    v_and_b32 v48, 64, {vRl}
    v_add_u32 v49, v49, v48
    buffer_load_dwordx4 v[26:29], v50, {XS}, 0 offen
    buffer_load_dwordx4 v[30:33], v50, {XS}, 0 offen offset:16
    buffer_load_ushort v34, v49, {XS}, {sXo} offen
    buffer_load_ushort v35, v49, {XS}, {sXo} offen offset:32
    ''')
    a(f'''
    v_lshrrev_b32 {vXw}, 1, {C_}
    v_lshlrev_b32 {vXw}, 5, {vXw}
    v_and_b32 {T}, 1, {G4}
    v_lshl_add_u32 {vXw}, {T}, 4, {vXw}
    v_and_b32 {T}, 1, {C_}
    v_lshl_add_u32 {vXw}, {T}, 3, {vXw}
    v_lshrrev_b32 {T}, 1, {G4}
    v_lshl_add_u32 {vXw}, {T}, 2, {vXw}
    s_lshl_b32 {sT0}, {sW}, 7
    s_add_u32 {sT0}, {sT0}, {XB}
    v_add_u32 {vXw}, {sT0}, {vXw}
    v_and_b32 v57, 1, {L_}
    v_lshlrev_b32 {vXr}, 5, {G4}
    v_lshl_add_u32 {vXr}, v57, 4, {vXr}
    v_lshl_add_u32 {vXr}, {B3}, 9, {vXr}
    v_add_u32 {vXr}, {XB}, {vXr}
    v_mov_b32 {vIdx}, 0xaaaaaaaa
    v_mul_lo_u32 {vIdx}, {vIdx}, v57
    v_add_u32 {vIdx}, 0x44444444, {vIdx}
    v_and_b32 v47, 31, {L_}
    v_mul_u32_u24 {vBQs}, {oCS}, v51
    v_lshl_add_u32 {vBQs}, v47, 2, {vBQs}
    v_lshlrev_b32 {vSTl}, 3, {N_}
    v_lshlrev_b32 {vBQl}, 11, v51
    v_lshl_add_u32 {vBQl}, v47, 4, {vBQl}
    v_and_b32 {T}, 1, {G4}
    v_mul_u32_u24 {vQw}, 1152, {T}
    v_bfe_u32 {T}, {L_}, 2, 2
    v_mul_u32_u24 {T}, 288, {T}
    v_add_u32 {vQw}, {vQw}, {T}
    v_lshl_add_u32 {vQw}, v51, 5, {vQw}
    v_and_b32 {T}, 3, {L_}
    v_lshl_add_u32 {vQw}, {T}, 2, {vQw}
    s_lshl_b32 {sT0}, {sW}, 6
    s_add_u32 {sT0}, {sT0}, {QB}
    v_add_u32 {vQw}, {sT0}, {vQw}
    v_mul_u32_u24 {vQr}, 288, {G4}
    v_lshl_add_u32 {vQr}, {N_}, 4, {vQr}
    v_add_u32 {vQr}, {QB}, {vQr}
    v_lshlrev_b32 {vMXr}, 5, {G4}
    v_add_u32 {vMXr}, {MX}, {vMXr}
    v_lshl_add_u32 {vMXw}, {B3}, 4, {vMXr}
    v_add_u32 {vMXw}, {vMXw}, {vFw}
    v_mul_u32_u24 {vPw}, 288, {B3}
    v_lshl_add_u32 {vPw}, {G4}, 6, {vPw}
    v_lshl_add_u32 {vPw}, v57, 4, {vPw}
    v_bfe_u32 {T}, {L_}, 1, 2
    v_lshl_add_u32 {vPw}, {T}, 2, {vPw}
    s_mul_i32 {sT0}, {sW}, 576
    s_add_u32 {sT0}, {sT0}, {PB}
    v_add_u32 {vPw}, {sT0}, {vPw}
    v_lshlrev_b32 {vMs}, 8, {G4}
    v_lshl_add_u32 {vMs}, v57, 7, {vMs}
    v_and_b32 {vLs}, 14, {L_}
    v_lshlrev_b32 {vLs}, 6, {vLs}
    v_lshlrev_b32 {vCOs}, 14, {G4}
    v_lshl_add_u32 {vCOs}, {N_}, 2, {vCOs}
    v_mov_b32 {vSeq}, 1
    ''')
    zero(CS, 4)
    a(f'''
    s_lshl_b32 {sT0}, {sRb}, 14
    s_lshr_b32 {sT1}, {sW}, 1
    s_lshl_b32 {sA}, {sT1}, 12
    s_add_u32 {sA}, {sA}, {sT0}
    s_and_b32 {sT0}, {sW}, 1
    s_lshl_b32 {sT0}, {sT0}, 7               ; (w&1)*128
    s_add_u32 {sA}, {sA}, {sT0}
    s_add_u32 {sA}, {sA}, {sT2}
    s_add_u32 {sA}, {sA}, {P['copy']*8192 - 0x20000 & 0xffffffff}
    s_add_u32 {sRl}, {sRs}, {P['copy']*8192 - 0x20000 & 0xffffffff}
    s_lshl_b32 {sCOl}, {sRb}, 1
    s_add_u32 {sCOl}, {sCOl}, {sT1}
    s_lshl_b32 {sMl}, {sCOl}, 7
    s_add_u32 {sMl}, {sMl}, {sT3}
    s_add_u32 {sMl}, {sMl}, {oM}
    s_lshl_b32 {sCOl}, {sCOl}, 13
    s_add_u32 {sCOl}, {sCOl}, {sT0}
    s_add_u32 {sCOl}, {sCOl}, {sT3}
    s_add_u32 {sCOl}, {sCOl}, {oCO}
    s_add_u32 {sCOl2}, {sCOl}, 4096
    s_lshl_b32 {sBQs}, {sCb}, 11
    s_add_u32 {sBQs}, {sBQs}, {sXo}
    s_add_u32 {sBQs}, {sBQs}, {sT3}
    s_lshl_b32 {sSTl}, {sCb}, 7
    s_add_u32 {sSTl}, {sSTl}, {sT3}
    s_add_u32 {sSTl}, {sSTl}, {oST}
    s_lshr_b32 {sT0}, {sXo}, 4
    s_add_u32 {sSTs}, {sSTl}, {sT0}
    s_lshl_b32 {sBQl}, {sW}, 12
    s_add_u32 {sBQl}, {sBQl}, {sT3}
    s_add_u32 {sCSl}, {sBQl}, {oCS}
    s_lshl_b32 {sMs}, {sCb}, 2
    s_add_u32 {sMs}, {sMs}, {sRb}
    s_lshl_b32 {sMs}, {sMs}, 2
    s_add_u32 {sMs}, {sMs}, {sT3}
    s_add_u32 {sMs}, {sMs}, {oM}
    s_lshl_b32 {sCOs}, {sI}, 2
    s_add_u32 {sCOs}, {sCOs}, {sW}
    s_lshl_b32 {sCOs}, {sCOs}, 6
    s_add_u32 {sCOs}, {sCOs}, {sT3}
    s_add_u32 {sCOs}, {sCOs}, {oCO}
    s_add_u32 {sCOs2}, {sCOs}, 8192
    s_mov_b32 {sU}, 0
    s_lshl_b32 {sDbg}, s2, 3
    s_add_u32 {sDbg}, {sDbg}, {sW}
    s_lshl_b32 {sDbg}, {sDbg}, 8
    s_add_u32 {sDbg}, {sDbg}, {DBG}
    ''')
    set64(mFull, (1 << 64) - 1); set64(mLo32, 0xffffffff); set64(mM3, 0x0003000300030003)
    set64(m5555, 0x5555); set64(mL63, 1 << 63); set64(mB4, 0xffff0000ffff0000); set64(mOdd, 0xaaaaaaaaaaaaaaaa)
    a('s_barrier')
    a('s_waitcnt vmcnt(0)')
    flag()
    stamp(1)
    a(f's_cmp_lg_u32 {sW}, 0\ns_cbranch_scc1 NOHS')
    a(f'''
    v_readfirstlane_b32 {sT0}, v56
    s_getreg_b32 {sT1}, hwreg(HW_REG_XCC_ID, 0, 4)
    s_mul_i32 {sTag}, {sT0}, 0x9e3779b1
    s_add_u32 {sTag}, {sTag}, 0x7f4a7c15
    v_mov_b32 v44, {sTag}
    v_mov_b32 v45, {sT1}
    v_lshrrev_b32 v46, 3, v47
    v_lshlrev_b32 v46, 6, v46
    v_bfe_u32 {T}, v47, 1, 2
    v_lshl_add_u32 v46, {T}, 3, v46
    v_add_u32 v46, v46, v57
    s_xor_b32 {sT0}, {sSet}, 1
    s_lshl_b32 {sT0}, {sT0}, 5
    s_lshl_b32 {sT2}, {sRb}, 1
    s_add_u32 {sT0}, {sT0}, {sT2}
    v_add_u32 v46, {sT0}, v46
    s_lshl_b32 {sT0}, {sJ}, 5
    v_add_u32 {T}, {sT0}, v47
    v_cndmask_b32 v46, v46, {T}, {mLo32}
    v_lshlrev_b32 v46, 7, v46
    s_add_u32 {sT0}, {sT0}, {sI}
    s_lshl_b32 {sT0}, {sT0}, 7
    s_add_u32 {sT0}, {sT0}, {RDY}
    s_mov_b32 {sT2}, {RDY}
    ''')
    a.label('HS1')
    a(f'''
    ds_read_b128 v[40:43], {vZ} offset:{FS}
    s_waitcnt lgkmcnt(0)
    v_min3_u32 v40, v40, v41, v42
    v_min_u32 v40, v40, v43
    v_cmp_gt_u32 vcc, 1, v40
    s_cbranch_vccnz {retry('HS1')}
    s_mov_b64 exec, 1
    buffer_store_dwordx2 v[44:45], off, {WS}, {sT0} sc1
    s_mov_b64 exec, -1
    ''')
    a.label('HS2')
    a(f'''
    buffer_load_dwordx2 v[40:41], v46, {WS}, {sT2} offen sc1
    s_waitcnt vmcnt(0)
    v_cmp_ne_u32 vcc, {sTag}, v40
    s_cbranch_vccnz {retry('HS2')}
    v_cmp_ne_u32 vcc, {sT1}, v41
    s_nop 3
    s_cmp_eq_u32 vcc_lo, 0
    s_cselect_b32 {sT0}, 2, 1
    v_mov_b32 v40, {sT0}
    ds_write_b32 {vZ}, v40 offset:{FM}
    ''')
    a.label('NOHS')
    a(f'v_mov_b32 {vSeq}, 2')
    a(f's_cmp_lg_u32 {sSet}, 0\ns_cbranch_scc1 NOX')
    a(f'v_lshl_or_b32 v42, v35, 16, v34')
    a(f'v_dot2_f32_bf16 v36, v26, {sOne2}, 0')
    for k in range(1, 8): a(f'v_dot2_f32_bf16 v36, v{26+k}, {sOne2}, v36')
    for c in ('row_ror:8', 'row_ror:4', 'row_ror:2', 'row_ror:1'): dpp('v_add_f32', 36, 36, c)
    dpp('v_add_f32', 36, 36, 'row_bcast:15', rm='0xa'); dpp('v_add_f32', 36, 36, 'row_bcast:31', rm='0xc')
    a(f'''
    v_mul_f32 v36, 0x3a800000, v36
    v_readlane_b32 {sT0}, v36, 63
    s_cmp_eq_u32 {sPub}, 0
    s_cbranch_scc1 NORES0
    buffer_store_dword v42, {vRs}, {WS}, {sRs} offen sc1
    ''')
    a.label('NORES0')
    a(f'''
    v_lshlrev_b32 v34, 16, v34
    v_lshlrev_b32 v35, 16, v35
    v_subrev_f32 v34, {sT0}, v34
    v_subrev_f32 v35, {sT0}, v35
    v_cvt_pk_bf16_f32 v43, v34, v35
    ds_write_b32 {vXw}, v43
    ''')
    a.label('NOX')
    traddr(26, LW)
    for kq in range(4):
        waitload(4*kq + 4, 52)
        trq(26, kq, 0)
    a('s_waitcnt lgkmcnt(0)')
    flag()
    stamp(2)
    a.label('WM')
    a(f'''
    ds_read_b32 v52, {vZ} offset:{FM}
    s_waitcnt lgkmcnt(0)
    v_cmp_eq_u32 vcc, 0, v52
    s_cbranch_vccnz {retry('WM')}
    v_readfirstlane_b32 {sMode}, v52
    ''')
    stamp(3)
    zero(44, 8)
    a(f's_mov_b64 {mBQ}, -1')
    a(f's_cmp_eq_u32 {sSet}, 0\ns_cbranch_scc1 AFTERA')
    a(f'v_add_u32 {vSeq}, 1, {vSeq}')
    for k in range(4): a(f'v_mov_b32 v{26+k}, {sOne2}')
    for kq in range(4):
        smf(44, 26, 16*kq); smf(48, 26, 16*kq + 8)
    a(f'''
    v_add_f32 v44, v44, v45
    v_add_f32 v48, v48, v49
    v_cndmask_b32 v44, v44, v48, {mB4}
    s_not_b64 exec, {mLo32}
    ''')
    gstore([f'buffer_store_dword v44, {vBQs}, {WS}, {sBQs} offen'])
    a(f's_mov_b64 exec, -1\ns_mov_b64 {mBQ}, {mLo32}')
    def csgather():
        L = lab('CSG')
        a.label(L)
        for r in range(4): a(f'buffer_load_dwordx4 {vr(26+4*r,4)}, {vBQl}, {WS}, {sCSl} offen offset:{512*r} sc1')
        a('s_waitcnt vmcnt(0)')
        for h in range(2):
            a(f'v_pk_add_f32 {vr(CS+2*h,2)}, {vr(26+2*h,2)}, {vr(30+2*h,2)}')
            a(f'v_pk_add_f32 {vr(34+2*h,2)}, {vr(34+2*h,2)}, {vr(38+2*h,2)}')
        for h in range(2): a(f'v_pk_add_f32 {vr(CS+2*h,2)}, {vr(CS+2*h,2)}, {vr(34+2*h,2)}')
        a(f'v_cmp_u_f32 vcc, v{CS}, v{CS+1}\nv_cmp_u_f32 {mT}, v{CS+2}, v{CS+3}\ns_nop 0\ns_or_b64 vcc, vcc, {mT}')
        a(f's_cbranch_vccnz {retry(L)}')
    csgather()

    a.label('LOOP')
    zero(44, 8)
    stamp(4)
    a.label('APOLL')
    a(f'''
    buffer_load_dwordx4 v[26:29], {vG}, {WS}, {sA} offen sc1
    buffer_load_dwordx4 v[30:33], {vG}, {WS}, {sA} offen offset:2048 sc1
    buffer_load_dword v42, {vRl}, {WS}, {sRl} offen sc1
    s_waitcnt vmcnt(2)
    ''')
    for k in range(4):
        a(f'v_lshlrev_b32 v{34+2*k}, 16, v{26+k}\nv_and_b32 v{35+2*k}, 0xffff0000, v{26+k}')
    a('s_waitcnt vmcnt(1)')
    for k in range(4):
        a(f'v_dot2_f32_bf16 v{34+2*k}, v{30+k}, {sLo}, v{34+2*k}\nv_dot2_f32_bf16 v{35+2*k}, v{30+k}, {sHi}, v{35+2*k}')
    a('s_waitcnt vmcnt(0)')
    a('v_lshlrev_b32 v52, 16, v42\nv_and_b32 v53, 0xffff0000, v42')
    butterfly(34)
    a(f'''
    v_pk_add_f32 v[34:35], v[34:35], v[52:53]
    v_cvt_pk_bf16_f32 v43, v34, v35
    ds_write_b32 {vXw}, v43
    v_cmp_u_f32 vcc, v34, v35
    s_cbranch_vccnz {retry('APOLL')}
    ''')
    flag()
    a(f's_cmp_eq_u32 {sU}, 2\ns_cbranch_scc1 FINAL')
    a(f's_cmp_eq_u32 {sPub}, 0\ns_cbranch_scc1 AFTERA')
    a(f'buffer_store_dword v43, {vRs}, {WS}, {sRs} offen sc1')
    a.label('AFTERA')
    stamp(5)
    def stats():
        a(f'v_dot2_f32_bf16 v56, v43, {sOne2}, 0\nv_dot2_f32_bf16 v57, v43, v43, 0')
        for c in ('quad_perm:[1,0,3,2]', 'quad_perm:[2,3,0,1]', 'row_half_mirror'):
            dpp('v_add_f32', 56, 56, c); dpp('v_add_f32', 57, 57, c)
        for c, rm in (('row_bcast:15', '0xa'), ('row_bcast:31', '0xc')):
            dpp('v_add_f32', 56, 56, c, rm=rm); dpp('v_add_f32', 57, 57, c, rm=rm)
        a(f's_mov_b64 exec, {mL63}')
        gstore([f'buffer_store_dwordx2 v[56:57], off, {WS}, {sSTs}'])
        a(f's_mov_b64 exec, {mFull}')
    sync([f'ds_read_b128 {vr(26+4*k,4)}, {vXr} offset:{128*k}' for k in range(4)], 52, stats)
    for kq in range(4):
        a(f's_waitcnt lgkmcnt({3-kq})')
        smf(44, 26+4*kq, 16*kq); smf(48, 26+4*kq, 16*kq + 8)
    a(f'''
    v_add_f32 v44, v44, v45
    v_add_f32 v48, v48, v49
    v_cndmask_b32 v44, v44, v48, {mB4}
    s_mov_b64 exec, {mBQ}
    ''')
    gstore([f'buffer_store_dword v44, {vBQs}, {WS}, {sBQs} offen'])
    a(f's_mov_b64 exec, {mFull}')
    stamp(6)
    a(f's_cmp_lg_u32 {sU}, 0\ns_cbranch_scc1 NOKV')
    a(f'''
    v_mbcnt_lo_u32_b32 v30, -1, 0
    v_mbcnt_hi_u32_b32 v30, -1, v30
    v_and_b32 v31, 15, v30
    v_lshrrev_b32 v30, 4, v30
    v_xor_b32 v30, v30, v31
    v_lshlrev_b32 v30, 4, v30
    v_lshl_add_u32 v26, v31, 8, v30
    s_lshl_b32 {sT0}, {sW}, 13
    s_add_u32 {sT0}, {sT0}, {LK}
    v_add_u32 v26, {sT0}, v26
    v_xor_b32 v27, 64, v26
    v_xor_b32 v28, 0x80, v26
    v_xor_b32 v29, 0xc0, v26
    ''')
    waitload(24, 52)
    for b in range(2):
        for hf in range(2):
            for q in range(2):
                a(f'ds_read_b128 {ar(64 + 16*b + 8*hf + 4*q, 4)}, v{26 + 2*hf + q} offset:{4096*b}')
    traddr(30, LV)
    waitload(32, 52)
    for hf in range(2): trq(30, hf, 96)
    a.label('NOKV')
    a.label('BST')
    a(f'''
    buffer_load_dwordx2 v[26:27], {vSTl}, {WS}, {sSTl} offen sc1
    ''')
    zero(44, 8)
    a(f'''
    s_waitcnt vmcnt(0)
    v_cmp_u_f32 vcc, v26, v27
    s_cbranch_vccnz {retry('BST')}
    ''')
    def bloads(o):
        for r in range(4): o(f'buffer_load_dwordx4 {vr(28+4*r,4)}, {vBQl}, {WS}, {sBQl} offen offset:{512*r} sc1')
    bloads(a)
    stamp(7)
    for c in ('row_ror:8', 'row_ror:4', 'row_ror:2', 'row_ror:1'):
        dpp('v_add_f32', 26, 26, c); dpp('v_add_f32', 27, 27, c)
    SC = 128 ** -0.5 * 1.4426950408889634
    import struct
    fb = lambda x: hex(struct.unpack('<I', struct.pack('<f', x))[0])
    a(f'''
    v_mul_f32 v26, {fb(-1/1024)}, v26
    v_mov_b32 v58, {fb(1e-5)}
    v_fmac_f32 v58, {fb(1/1024)}, v27
    v_fma_f32 v58, -v26, v26, v58
    v_rsq_f32 v58, v58
    v_pk_mul_f32 v[60:61], {vr(CS,2)}, v[26:27] op_sel_hi:[1,0]
    v_pk_mul_f32 v[62:63], {vr(CS+2,2)}, v[26:27] op_sel_hi:[1,0]
    v_mul_f32 v58, {fb(SC)}, v58
    ''')
    a.label('BQ2')
    a('''
    s_waitcnt vmcnt(3)
    v_pk_add_f32 v[28:29], v[28:29], v[60:61]
    v_pk_add_f32 v[30:31], v[30:31], v[62:63]
    ''')
    for r in range(1, 4):
        a(f's_waitcnt vmcnt({3-r})')
        a(f'v_pk_add_f32 v[28:29], v[28:29], {vr(28+4*r,2)}\nv_pk_add_f32 v[30:31], v[30:31], {vr(30+4*r,2)}')
    rb_ = lab('RB')
    ool.label(rb_); bloads(ool); ool(f's_sub_u32 {sBud}, {sBud}, 1\ns_cbranch_scc0 BQ2\ns_branch FAIL')
    a(f'''
    v_pk_mul_f32 v[28:29], v[28:29], v[58:59] op_sel_hi:[1,0]
    v_pk_mul_f32 v[30:31], v[30:31], v[58:59] op_sel_hi:[1,0]
    v_cvt_pk_bf16_f32 v32, v28, v29
    v_cvt_pk_bf16_f32 v33, v30, v31
    v_cmp_u_f32 vcc, v28, v29
    v_cmp_u_f32 {mT}, v30, v31
    ds_write2_b32 {vQw}, v32, v33 offset1:4
    s_or_b64 vcc, vcc, {mT}
    s_cbranch_vccnz {rb_}
    ''')
    flag()
    stamp(8)
    sync([f'ds_read_b128 {vr(26+4*hf,4)}, {vQr} offset:{1152*hf}' for hf in range(2)], 52)
    for hf in range(2):
        a(f's_waitcnt lgkmcnt({1-hf})')
        smf(44, 26+4*hf, 64 + 8*hf); smf(48, 26+4*hf, 80 + 8*hf)
    a('''
    v_add_f32 v34, v44, v45
    v_add_f32 v36, v46, v47
    v_add_f32 v35, v48, v49
    v_add_f32 v37, v50, v51
    v_max_f32 v38, v34, v35
    v_max_f32 v39, v36, v37
    ''')
    dpp('v_max_f32', 40, 38, 'row_ror:8', bm='0x3'); dpp('v_max_f32', 40, 39, 'row_ror:8', bm='0xc')
    for c in ('row_half_mirror', 'quad_perm:[1,0,3,2]', 'quad_perm:[2,3,0,1]'): dpp('v_max_f32', 40, 40, c)
    a(f'ds_write_b32 {vMXw}, v40')
    flag()
    sync([f'ds_read_b128 {vr(26+4*h,4)}, {vMXr} offset:{16*h}' for h in range(2)], 52, lambda: zero(44, 8))
    a(f'''
    s_waitcnt lgkmcnt(1)
    v_max3_f32 v26, v26, v27, v28
    v_max_f32 v26, v26, v29
    s_waitcnt lgkmcnt(0)
    v_max3_f32 v30, v30, v31, v32
    v_max_f32 v30, v30, v33
    v_sub_f32 v34, v34, v26
    v_sub_f32 v35, v35, v26
    v_sub_f32 v36, v36, v30
    v_sub_f32 v37, v37, v30
    v_exp_f32 v34, v34
    v_exp_f32 v35, v35
    v_exp_f32 v36, v36
    v_exp_f32 v37, v37
    v_cvt_pk_bf16_f32 v38, v34, v35
    v_cvt_pk_bf16_f32 v39, v36, v37
    ds_write2_b32 {vPw}, v38, v39 offset1:8
    ''')
    flag()
    stamp(9)
    def pubm():
        x = lab('NM')
        a(f's_cmp_lg_u32 {sW}, 0\ns_cbranch_scc1 {x}')
        a(f'v_cndmask_b32 v40, v26, v30, {mOdd}\ns_mov_b64 exec, {mM3}')
        gstore([f'buffer_store_dword v40, {vMs}, {WS}, {sMs} offen'])
        a(f's_mov_b64 exec, {mFull}')
        a.label(x)
    sync([f'ds_read_b128 {vr(32+4*hf,4)}, {vQr} offset:{PB-QB + 1152*hf}' for hf in range(2)], 52, pubm)
    for hf in range(2):
        a(f's_waitcnt lgkmcnt({1-hf})')
        smf(44, 32+4*hf, 96 + 16*hf); smf(48, 32+4*hf, 96 + 16*hf + 8)
    a(f's_cmp_lg_u32 {sW}, 1\ns_cbranch_scc1 NOL')
    a(f'v_dot2_f32_bf16 v40, v32, {sOne2}, 0')
    for k in range(1, 8): a(f'v_dot2_f32_bf16 v40, v{32+k}, {sOne2}, v40')
    dpp('v_add_f32', 40, 40, 'quad_perm:[1,0,3,2]')
    a('''
    v_mov_b32 v41, v40
    v_permlane16_swap_b32 v40, v41
    v_add_f32 v40, v40, v41
    v_mov_b32 v41, v40
    v_permlane32_swap_b32 v40, v41
    v_add_f32 v40, v40, v41
    ''')
    a(f's_mov_b64 exec, {m5555}')
    gstore([f'buffer_store_dword v40, {vLs}, {WS}, {sMs} offen offset:{oL-oM}'])
    a(f's_mov_b64 exec, {mFull}')
    a.label('NOL')
    a('''
    v_add_f32 v44, v44, v45
    v_add_f32 v46, v46, v47
    v_add_f32 v48, v48, v49
    v_add_f32 v50, v50, v51
    v_cvt_pk_bf16_f32 v44, v44, v48
    v_cvt_pk_bf16_f32 v46, v46, v50
    ''')
    gstore([f'buffer_store_dword v44, {vCOs}, {WS}, {sCOs} offen', f'buffer_store_dword v46, {vCOs}, {WS}, {sCOs2} offen'])
    stamp(10)
    a.label('CM')
    a(f'''
    buffer_load_dwordx4 v[26:29], {vMl}, {WS}, {sMl} offen sc1
    s_waitcnt vmcnt(0)
    v_cmp_u_f32 vcc, v26, v27
    v_cmp_u_f32 {mT}, v28, v29
    s_nop 0
    s_or_b64 vcc, vcc, {mT}
    s_cbranch_vccnz {retry('CM')}
    ''')
    def cloads(o):
        o(f'buffer_load_dwordx4 v[30:33], {vMl}, {WS}, {sMl} offen offset:{oL-oM} sc1')
        for k in range(4):
            o(f'buffer_load_dwordx4 {vr(34+4*k,4)}, {vG}, {WS}, {(sCOl, sCOl2)[k>>1]} offen offset:{2048*(k&1)} sc1')
    cloads(a)
    stamp(11)
    a('v_max3_f32 v50, v26, v27, v28\nv_max_f32 v50, v50, v29')
    dpp('v_max_f32', 50, 50, 'row_ror:8'); dpp('v_max_f32', 50, 50, 'row_bcast:15', rm='0xa'); dpp('v_max_f32', 50, 50, 'row_bcast:31', rm='0xc')
    a(f'v_readlane_b32 {sT0}, v50, 63')
    for k in range(4): a(f'v_subrev_f32 v{26+k}, {sT0}, v{26+k}')
    for k in range(4): a(f'v_exp_f32 v{26+k}, v{26+k}')
    for k in range(4): a(f'v_lshrrev_b32 v{50+k}, 16, v{26+k}')
    for k in range(4): a(f'v_and_b32 v{26+k}, 0xffff0000, v{26+k}')
    a.label('CO2')
    a('''
    s_waitcnt vmcnt(4)
    v_mul_f32 v54, v26, v30
    v_fmac_f32 v54, v27, v31
    v_fmac_f32 v54, v28, v32
    v_fmac_f32 v54, v29, v33
    ''')
    extra = [lambda: dpp('v_add_f32', 54, 54, 'row_ror:8'), lambda: dpp('v_add_f32', 54, 54, 'row_bcast:15', rm='0xa'),
             lambda: dpp('v_add_f32', 54, 54, 'row_bcast:31', rm='0xc'), lambda: a(f'v_readlane_b32 {sT1}, v54, 63'),
             lambda: a(f'v_rcp_f32 v54, {sT1}')]
    for k in range(4):
        a(f's_waitcnt vmcnt({3-k})')
        for d in range(4):
            c0, c1 = ('0', '0') if k == 0 else (f'v{56+2*d}', f'v{57+2*d}')
            a(f'v_dot2_f32_bf16 v{56+2*d}, v{34+4*k+d}, v{50+k}, {c0}')
            a(f'v_dot2_f32_bf16 v{57+2*d}, v{34+4*k+d}, v{26+k}, {c1}')
            if d % 2 == 1 and extra: extra.pop(0)()
    rc_ = lab('RC')
    ool.label(rc_); cloads(ool); ool(f's_sub_u32 {sBud}, {sBud}, 1\ns_cbranch_scc0 CO2\ns_branch FAIL')
    butterfly(56)
    a(f'''
    v_pk_mul_f32 v[56:57], v[56:57], v[54:55] op_sel_hi:[1,0]
    v_cvt_pk_bf16_f32 v58, v56, v57
    ds_write_b32 {vXw}, v58 offset:{OB-XB}
    v_cmp_u_f32 vcc, v56, v57
    s_cbranch_vccnz {rc_}
    ''')
    flag()
    stamp(12)
    sync([f'ds_read_b128 {vr(26+4*k,4)}, {vXr} offset:{OB-XB + 128*k}' for k in range(4)], 52, lambda: zero(44, 8))
    a(f's_cmp_eq_u32 {sU}, 0\ns_cbranch_scc1 WO0')
    for kq in range(4):
        a(f's_waitcnt lgkmcnt({3-kq})')
        smf(44, 26+4*kq, 128 + 16*kq); smf(48, 26+4*kq, 128 + 16*kq + 8)
    a.label('S3T')
    a(f'''
    v_add_f32 v44, v44, v45
    v_add_f32 v48, v48, v49
    v_cvt_pk_bf16_f32 v44, v44, v48
    s_mov_b64 exec, {mLo32}
    buffer_store_dword v44, {vABs}, {WS}, {sABs} offen sc1
    s_mov_b64 exec, {mFull}
    ''')
    stamp(13)
    dumpstamps(sU)
    a(f's_cmp_lg_u32 {sU}, 0\ns_cbranch_scc1 LAST')
    for s in (sA, sRl, sRs, sABs): a(f's_add_u32 {s}, {s}, 0x40000')
    for s in (sBQs, sSTs, sSTl, sBQl, sMs, sMl, sCOs, sCOs2, sCOl, sCOl2): a(f's_add_u32 {s}, {s}, {USE}')
    a(f's_mov_b32 {sU}, 1\ns_mov_b64 {mBQ}, {mLo32}')
    a(f's_cmp_lg_u32 {sSet}, 0\ns_cbranch_scc1 LOOP')
    csgather()
    a('s_branch LOOP')
    a.label('LAST')
    a(f'''
    s_cmp_lg_u32 {sSet}, 0
    s_cbranch_scc1 EXIT
    s_cmp_eq_u32 {sPub}, 0
    s_cbranch_scc1 EXIT
    s_add_u32 {sA}, {sA}, 0x40000
    s_add_u32 {sRl}, {sRl}, 0x40000
    s_mov_b32 {sU}, 2
    v_and_b32 v49, 63, {vRl}
    v_lshrrev_b32 v49, 1, v49
    v_and_b32 v48, 64, {vRl}
    v_add_u32 v49, v49, v48
    s_branch APOLL
    ''')
    a.label('FINAL')
    a(f'''
    buffer_store_short v43, v49, {OS}, {sXo} offen
    buffer_store_short_d16_hi v43, v49, {OS}, {sXo} offen offset:32
    s_cmp_lg_u32 {sXo}, 0
    s_cbranch_scc1 FIN2
    v_mov_b32 v26, {sTag}
    s_mov_b64 exec, 1
    buffer_store_dword v26, off, {WS}, 0 sc1
    s_mov_b64 exec, -1
    ''')
    a.label('FIN2')
    stamp(5)
    dumpstamps(sU)
    a('s_endpgm')
    a.label('WO0')
    traddr(56, LW)
    for kq in range(4):
        waitload(36 + 4*kq, 52)
        trq(56, kq, 128)
        a('s_waitcnt lgkmcnt(0)')
        smf(44, 26+4*kq, 128 + 16*kq); smf(48, 26+4*kq, 128 + 16*kq + 8)
    a('s_branch S3T')

    a.label('LOADER')
    sWl, sI0, sOff, sOff2, sM, sCnt, sEnd = 's24', 's25', 's26', 's27', 's28', 's29', 's30'
    vWq, vK, vV, vWo, vC = 'v2', 'v3', 'v4', 'v5', 'v6'
    if P['stamps']: a('s_memtime s[64:65]')
    a(f'''
    s_sub_u32 {sWl}, {sW}, 4
    s_lshr_b32 {sI0}, {sWl}, 1
    s_lshl_b32 {sI0}, {sI0}, 2
    s_and_b32 {sT0}, {sWl}, 1
    s_add_u32 {sI0}, {sI0}, {sT0}
    v_lshrrev_b32 v10, 4, v63
    v_and_b32 v11, 15, v63
    v_and_b32 v12, 1, v10
    s_lshl_b32 {sT0}, {sWl}, 2
    v_lshl_or_b32 v12, v12, 1, {sT0}
    v_xor_b32 v12, v12, v11
    v_lshlrev_b32 v12, 4, v12
    v_add_u32 v13, {sT0}, v10
    v_xor_b32 v13, v13, v11
    v_lshlrev_b32 v13, 4, v13
    s_lshl_b32 {sT0}, {sRb}, 6
    s_add_u32 {sT0}, {sT0}, {sI0}
    s_lshl_b32 {sT1}, {sT0}, 15
    s_lshl_b32 {sT2}, {sG}, 3
    s_add_u32 {sT2}, {sT2}, {sCb}
    s_lshl_b32 {sT2}, {sT2}, 8
    s_add_u32 {sT1}, {sT1}, {sT2}
    v_lshl_add_u32 {vWq}, v10, 13, v12
    v_add_u32 {vWq}, {sT1}, {vWq}
    s_lshl_b32 {sT1}, {sG}, 8
    s_add_u32 {sT0}, {sT0}, {sT1}
    s_lshl_b32 {sT0}, {sT0}, 13
    s_lshl_b32 {sT1}, {sCb}, 8
    s_add_u32 {sT0}, {sT0}, {sT1}
    v_lshl_add_u32 {vWo}, v10, 11, v12
    v_add_u32 {vWo}, {sT0}, {vWo}
    s_lshl_b32 {sT0}, {sG}, 24
    s_lshl_b32 {sT1}, {sI}, 15
    s_add_u32 {sT0}, {sT0}, {sT1}
    s_add_u32 {sT0}, {sT0}, {61440*256}
    s_lshl_b32 {sT1}, {sI0}, 10
    s_add_u32 {sT1}, {sT1}, {sT0}
    v_lshl_add_u32 {vV}, v10, 8, v12
    v_add_u32 {vV}, {sT1}, {vV}
    s_lshl_b32 {sT1}, {sWl}, 10
    s_add_u32 {sT1}, {sT1}, {sT0}
    v_lshl_add_u32 {vK}, v10, 8, v13
    v_add_u32 {vK}, {sT1}, {vK}
    s_cmp_eq_u32 {sSet}, 0
    s_cselect_b32 {sCnt}, {-P['WA']}, {-P['WB']}
    s_cselect_b64 vcc, 0, -1
    s_waitcnt lgkmcnt(0)
    s_mov_b32 s8, s88
    s_mov_b32 s9, s89
    s_mov_b32 s10, 0x800000
    s_mov_b32 s11, 0x00020000
    s_mov_b32 s12, s84
    s_mov_b32 s13, s85
    s_mov_b32 s14, 0x4000000
    s_mov_b32 s15, 0x00020000
    s_mov_b32 s16, s86
    s_mov_b32 s17, s87
    s_mov_b32 s18, 0x4000000
    s_mov_b32 s19, 0x00020000
    s_mov_b32 s20, s90
    s_mov_b32 s21, s91
    s_mov_b32 s22, 0x800000
    s_mov_b32 s23, 0x00020000
    ''')
    assert P['WB'] <= P['WA']
    def lloop(srd, va, mbase_s, mbase, d2, m2, dstep, mstep, n, first=False):
        a(f's_lshl_b32 {sM}, {mbase_s}, 10\ns_add_u32 {sM}, {sM}, {mbase}\ns_mov_b32 {sOff}, 0')
        def body(bar):
            x = lab('LS')
            a(f'''
            s_mov_b32 m0, {sM}
            s_add_u32 {sOff2}, {sOff}, {d2}
            buffer_load_dwordx4 {va}, {srd}, {sOff} offen nt lds
            s_add_u32 m0, {sM}, {m2}
            s_add_u32 {sOff}, {sOff}, {dstep}
            buffer_load_dwordx4 {va}, {srd}, {sOff2} offen nt lds
            s_add_u32 {sM}, {sM}, {mstep}
            s_add_u32 {sCnt}, {sCnt}, 2
            v_mov_b32 {vC}, {sCnt}
            ''')
            if bar: a('s_barrier')
            if P['WB'] != P['WA']:
                a(f's_cbranch_vccz {x}\ns_waitcnt vmcnt({P["WB"]})')
                a.label(x)
            a(f's_waitcnt vmcnt({P["WA"]})\nds_write_b32 {vFw}, {vC}')
        if first: body(True)
        L = lab('LL')
        a.label(L)
        body(False)
        a(f's_cmp_lt_u32 {sOff}, {n*dstep}\ns_cbranch_scc1 {L}')
    lloop('s[8:11]', vWq, sI0, LW, 0x10000, 2048, 0x40000, 8192, 8, first=True)
    lloop('s[12:15]', vK, sWl, LK, 4096, 4096, 8192, 8192, 4)
    lloop('s[16:19]', vV, sI0, LV, 2048, 2048, 8192, 8192, 4)
    a.label('LWC')
    a(f'''
    ds_read_b128 v[10:13], {vZ} offset:{FS}
    s_waitcnt lgkmcnt(0)
    v_min3_u32 v10, v10, v11, v12
    v_min_u32 v10, v10, v13
    v_cmp_gt_u32 {mT}, 2, v10
    s_nop 3
    s_cmp_lg_u32 s56, 0
    s_cbranch_scc1 {retry('LWC')}
    ''')
    lloop('s[20:23]', vWo, sI0, LW, 0x4000, 2048, 0x10000, 8192, 8)
    for k in range(P['WA'] - 2, -1, -2):
        a(f'v_mov_b32 {vC}, {48-k}\ns_waitcnt vmcnt({k})\nds_write_b32 {vFw}, {vC}')
    a('s_waitcnt lgkmcnt(0)')
    a.label('FAIL')
    a.label('EXIT')
    a('s_endpgm')
    lines = a.lines + ool.lines
    lines, n = hazard.fix(lines)
    body = '\n'.join(lines) + '\n'
    return body, n

HEADER = open('interleave_layers__sliding_block_cached__sliding_block_cached__decode.s.ref').read().split('; Override')[0]

def source(**kw):
    body, n = gen(**kw)
    return wrap(NAME, body, 256, 512, LDS, 256, 64, 13, header=HEADER), n

if __name__ == '__main__':
    src, n = source()
    print('nops added', n, 'lines', src.count('\n'))
    build(src, NAME, 13, 'k.co')
    srcs, _ = source(stamps=True)
    build(srcs, NAME, 13, 'ks.co')
    if len(sys.argv) > 1: open(sys.argv[1], 'w').write(src)
```

```python
import re
TRANS = ('v_exp_','v_log_','v_rcp_','v_rsq_','v_sqrt_','v_sin_','v_cos_')
def regs(tok):
    tok = tok.strip()
    tok = tok.lstrip('-').strip('|')
    m = re.fullmatch(r'([vas])(\d+)', tok)
    if m: return {(m.group(1), int(m.group(2)))}
    m = re.fullmatch(r'([vas])\[(\d+):(\d+)\]', tok)
    if m: return {(m.group(1), i) for i in range(int(m.group(2)), int(m.group(3))+1)}
    if tok in ('vcc','vcc_lo','vcc_hi'): return {('s','vcc')}
    if tok in ('exec','exec_lo','exec_hi'): return {('s','exec')}
    if tok == 'm0': return {('s','m0')}
    return set()
class I:
    def __init__(self, line):
        self.line = line
        s = line.split(';')[0].strip()
        self.label = s[:-1] if s.endswith(':') else None
        self.dir = s.startswith('.') and not self.label
        self.op = None; self.w = set(); self.r = set(); self.cls = None; self.states = 0
        self.target = None; self.srcC = set(); self.ab = set()
        if not s or self.label or self.dir: return
        p = s.split(None, 1); op = p[0]; self.op = op
        rest = p[1] if len(p) > 1 else ''
        ops = [o.strip() for o in re.split(r',(?![^\[]*\])(?![^(]*\))', rest)] if rest else []
        mods = ''
        if ops:
            q = ops[-1].split(None, 1); ops[-1] = q[0]; mods = q[1] if len(q) > 1 else ''
        self.states = 1
        R = [regs(o) for o in ops]
        allr = set().union(*R) if R else set()
        self.dpp = '_dpp' in op or 'row_' in mods or 'quad_perm' in mods
        if op == 's_nop': self.cls = 'nop'; self.states = int(ops[0], 0)+1
        elif op.startswith('s_cbranch') or op == 's_branch': self.cls = 'br'; self.target = ops[0]
        elif op == 's_call_b64': self.cls = 'br'; self.target = ops[1]
        elif op == 's_setpc_b64': self.cls = 'salu'; self.r = allr
        elif op.startswith(('s_load','s_buffer_load','s_memtime','s_memrealtime')):
            self.cls = 'smem'; self.w = R[0]; self.r = set().union(*R[1:]) if len(R) > 1 else set()
        elif op.startswith('s_'):
            self.cls = 'salu'
            if op.startswith(('s_cmp','s_waitcnt','s_barrier','s_setprio','s_endpgm','s_bitcmp','s_sleep')): self.r = allr
            else: self.w = R[0]; self.r = set().union(*R[1:]) if len(R) > 1 else set()
        elif op.startswith(('v_mfma','v_smfmac')):
            self.cls = 'mfma'; self.w = R[0]
            if op.startswith('v_smfmac'): self.srcC = R[0]; self.ab = R[1] | R[2] | R[3]
            else: self.srcC = R[3]; self.ab = R[1] | R[2]
            self.r = self.srcC | self.ab
            self.passes = 8 if '32x32' in op else (2 if '4x4x4' in op else 4)
        elif op.startswith('v_'):
            self.cls = 'valu'
            self.trans = op.startswith(TRANS); self.dot = op.startswith('v_dot')
            self.perml = op.startswith('v_permlane'); self.rdl = op.startswith(('v_readlane','v_readfirstlane'))
            self.w = set(R[0]); self.r = set().union(*R[1:]) if len(R) > 1 else set()
            if self.perml and 'swap' in op: self.w = R[0] | R[1]; self.r = R[0] | R[1]
            if op.startswith(('v_dot2c','v_fmac','v_mac','v_writelane')) or self.dpp: self.r |= R[0]
            if op.startswith('v_cndmask') and len(ops) == 3: self.r |= {('s','vcc')}
            assert not op.startswith('v_cmpx'), 'v_cmpx unsupported'
            if '_co_' in op: self.w |= R[1]; self.r = set().union(*R[2:])
            if self.dot:
                self.srcC = R[3] if len(R) > 3 else R[0]; self.ab = R[1] | R[2]
        elif op.startswith(('buffer_','global_')):
            self.cls = 'vmem'; self.lds = bool(re.search(r'\blds\b', mods))
            ld = '_load' in op
            if op.startswith('buffer_'):
                if ld and not self.lds: self.w = R[0]; self.r = set().union(*R[1:])
                else: self.r = allr
                self.wide = R[0] if (not ld and op.endswith(('x3','x4'))) else set()
            else:
                if ld: self.w = R[0]; self.r = set().union(*R[1:])
                else: self.r = allr
                self.wide = R[1] if (not ld and op.endswith(('x3','x4'))) else set()
            if 'd16' in op and ld: self.r |= self.w
        elif op.startswith('ds_'):
            self.cls = 'ds'
            if op.startswith('ds_read'): self.w = R[0]; self.r = set().union(*R[1:])
            else: self.r = allr
        else: raise ValueError('unknown op: ' + line)
def vec(S): return {x for x in S if x[0] in 'va'}
def sca(S): return {x for x in S if x[0] == 's'}
def need(p, c):
    n = 0
    if p.cls == 'valu':
        vw = vec(p.w); sw = sca(p.w)
        if c.cls == 'valu':
            if (c.dpp or c.perml) and vw & c.r: n = max(n, 2)
            if c.rdl and vw & c.r: n = max(n, 1)
            if p.trans and not c.trans and vw & c.r: n = max(n, 1)
            if sw & c.r: n = max(n, 4 if c.op.startswith(('v_readlane','v_writelane')) else 2)
        if c.cls == 'mfma' and vw & c.r: n = max(n, 2)
        if c.cls == 'vmem' and sw & c.r: n = max(n, 5)
        if p.dot and c.cls in ('valu','mfma','vmem','ds'):
            if c.op == p.op:
                if vw & c.ab: n = max(n, 3)
            elif vw & (c.r | c.w): n = max(n, 3)
    if p.cls == 'mfma':
        big = {2:5, 4:8, 8:12}[p.passes]
        if c.cls == 'mfma':
            if p.w & c.ab: n = max(n, big)
            if p.w & c.srcC and not (p.w == c.srcC and p.passes == c.passes): n = max(n, {2:4,4:6,8:10}[p.passes])
            if p.w == c.srcC and p.passes == 2: n = max(n, 2)
        elif c.cls in ('valu','vmem','ds'):
            if p.w & (c.r | c.w): n = max(n, big)
            if c.cls == 'valu' and p.srcC & c.w: n = max(n, {2:1,4:3,8:7}[p.passes])
    if p.cls == 'salu' and ('s','m0') in p.w and c.cls == 'vmem' and c.lds: n = max(n, 1)
    if p.cls == 'vmem' and p.wide and c.cls in ('valu','vmem','ds','mfma') and p.wide & c.w: n = max(n, 2 if c.cls == 'valu' else 1)
    return n
WIN = 13
def fix(lines):
    L = [I(l) for l in lines]
    added = 0
    while True:
        out = []; hist = []
        for x in L:
            if x.op is None: out.append(x); continue
            d = 0; n = 0
            for p in reversed(hist):
                n = max(n, need(p, x) - d); d += p.states
                if d >= WIN: break
            if n > 0:
                nop = I('    s_nop %d' % (n-1)); out.append(nop); hist.append(nop); added += 1
            out.append(x); hist.append(x)
            if x.op in ('s_branch','s_endpgm','s_setpc_b64'): hist = []
        L = out
        lab = {x.label: k for k, x in enumerate(L) if x.label}
        bad = None
        for k, x in enumerate(L):
            if x.cls != 'br': continue
            pre = []; d = 0; j = k
            while j >= 0 and d < WIN:
                y = L[j]
                if y.op:
                    if j < k and y.op in ('s_branch','s_endpgm','s_setpc_b64'): break
                    pre.append(y); d += y.states
                j -= 1
            j = lab[x.target]; dd = 0
            while j < len(L) and dd < WIN:
                y = L[j]
                if y.op:
                    d = dd
                    for p in pre:
                        if need(p, y) - d > 0: bad = (lab[x.target], need(p, y) - d); break
                        d += p.states
                    if bad: break
                    dd += y.states
                    if y.op in ('s_branch','s_endpgm','s_setpc_b64'): break
                j += 1
            if bad: break
        if not bad: break
        L.insert(bad[0]+1, I('    s_nop %d' % (bad[1]-1))); added += 1
    return [x.line for x in L], added
```

```python
import sys, os
from asmlib import *
import hazard
NAME = 'interleave_layers__sliding_block_cached__sliding_block_cached__decode_kernel'

DEF = dict(stamps=False, WA=4, WB=4, copy=0, budget=1 << 20, exp='', dbgtime=False, hsq=1, bgate=1, clr='', pre=0, ixor=0, seg64=0, wnt='nt')

FS, FL, FM, MX = 0, 16, 32, 128
XB, ONES, OB = 512, 1024, 1536
QB, PB = 2048, 4352
LW, LK, LV = 8192, 73728, 106496
LDS = 139264
RG, RX, CROSS, GRP = 0x8000, 0xa000, 0x20000, 0x200000
USE = 0x18000
oST, oM, oL, oCO, oCS = 0x4000, 0x4400, 0x4800, 0x8000, 0x30000
DBG = 0x100000

def gen(**kw):
    P = dict(DEF); P.update(kw)
    a = Asm()
    ool = Asm()
    cnt = [0]
    def lab(p):
        cnt[0] += 1
        return f'{p}_{cnt[0]}'
    sW = 's3'; WS = 's[4:7]'; XS = 's[8:11]'; OS = 's[12:15]'
    sA, sRl, sRs, sBQs, sSTs, sSTl, sBQl, sMs, sMl, sCOs, sCOs2, sCOl, sCOl2, sABs, sCSl = [f's{i}' for i in range(16, 31)]
    sMode, sBud, sU, sPub, sSet = 's31', 's32', 's33', 's34', 's35'
    sLo, sHi, sOne2, sXo = 's36', 's37', 's38', 's39'
    mFull, mLo32, mBQ, mM3, m5555, mL63, mB4, mOdd, mT = [f's[{i}:{i+1}]' for i in range(40, 58, 2)]
    sT0, sT1, sT2, sT3 = 's58', 's59', 's60', 's61'
    sTag, sDbg = 's62', 's63'
    sJ, sG, sI, sRb, sCb = 's96', 's97', 's98', 's99', 's100'
    sLd, sNeed, sRet = 's2', 's101', 's[0:1]'
    vTr = 'v55'; F = 56
    (vG, vRl, vRs, vXw, vXr, vIdx, vBQs, vSTl, vBQl, vQw, vQr, vMXw, vMXr, vPw, vMs, vLs, vCOs, vMl, vABs,
     vZ, vFw, vSeq) = [f'v{i}' for i in range(22)]
    CS = 22
    def vr(i, n=1): return f'v{i}' if n == 1 else f'v[{i}:{i+n-1}]'
    def ar(i, n=1): return f'a{i}' if n == 1 else f'a[{i}:{i+n-1}]'
    def set64(pair, val):
        i = int(pair[2:pair.index(':')])
        a(f's_mov_b32 s{i}, {hex(val & 0xffffffff)}')
        a(f's_mov_b32 s{i+1}, {hex(val >> 32)}')
    def stamp(k):
        if P['stamps']: a(f's_memtime s[{64+2*k}:{65+2*k}]')
    def retry(target):
        r = lab('RT')
        ool.label(r)
        ool(f's_sub_u32 {sBud}, {sBud}, 1\ns_cbranch_scc0 {target}\ns_branch FAIL')
        return r
    def gstore(instrs):
        s, b = lab('SS'), lab('SB')
        a(f's_cmp_eq_u32 {sMode}, 1\ns_cbranch_scc1 {s}')
        for x in instrs: a(x)
        a.label(b)
        ool.label(s)
        for x in instrs: ool(x + ' sc1')
        ool(f's_branch {b}')
    def flag():
        a(f'ds_write_b32 {vFw}, {vSeq}')
    def sync(reads, F, shadow=None):
        L = lab('SY'); C = lab('SC')
        def rd(o):
            o(f'ds_read_b128 {vr(F,4)}, {vZ} offset:{FS}')
            for r in reads: o(r)
        rd(a)
        if shadow: shadow()
        a.label(C)
        a(f's_waitcnt lgkmcnt({len(reads)})')
        a(f'v_min3_u32 v{F}, v{F}, v{F+1}, v{F+2}')
        a(f'v_min_u32 v{F}, v{F}, v{F+3}')
        a(f'v_cmp_gt_u32 vcc, {vSeq}, v{F}')
        a(f's_cbranch_vccnz {L}')
        a(f'v_add_u32 {vSeq}, 1, {vSeq}')
        ool.label(L)
        rd(ool)
        ool(f's_sub_u32 {sBud}, {sBud}, 1\ns_cbranch_scc0 {C}\ns_branch FAIL')
    def waitload(n, F):
        L = lab('WL')
        a.label(L)
        a(f'ds_read_b128 {vr(F,4)}, {vZ} offset:{FL}')
        a('s_waitcnt lgkmcnt(0)')
        a(f'v_min3_i32 v{F}, v{F}, v{F+1}, v{F+2}')
        a(f'v_min_i32 v{F}, v{F}, v{F+3}')
        a(f'v_cmp_gt_i32 vcc, {n}, v{F}')
        a(f's_cbranch_vccnz {retry(L)}')
    def ld(need, o=None, back=None):
        o = o or a
        c, b = lab('LC'), back or lab('LB')
        o(f's_cmp_lt_u32 {sLd}, 6\ns_cbranch_scc1 {c}')
        if not back: o.label(b)
        ool.label(c)
        ool(f's_mov_b32 {sNeed}, {need}\ns_call_b64 {sRet}, LD\ns_branch {b}')
    def smf(D, A, B):
        a(f'v_smfmac_f32_16x16x64_bf16 {vr(D,4)}, {vr(A,4)}, {ar(B,8)}, {vIdx}')
    def zero(D, n):
        for i in range(n): a(f'v_mov_b32 v{D+i}, 0')
    def dpp(op, d, s, ctl, rm='0xf', bm='0xf'):
        a(f'{op}_dpp v{d}, v{s}, v{s} {ctl} row_mask:{rm} bank_mask:{bm}')
    def traddr(t, base):
        a(f'''
        v_mbcnt_lo_u32_b32 v{t+2}, -1, 0
        v_mbcnt_hi_u32_b32 v{t+2}, -1, v{t+2}
        v_bfe_u32 v{t+3}, v{t+2}, 2, 1          ; kk&1
        v_bfe_u32 v{t+4}, v{t+2}, 3, 1          ; kk>>1
        v_lshrrev_b32 v{t+5}, 4, v{t+2}         ; g
        v_lshlrev_b32 v{t}, 4, v{t+3}
        v_lshl_add_u32 v{t}, v{t+5}, 2, v{t}
        v_add_u32 v{t}, v{t}, v{t+4}            ; row
        v_lshlrev_b32 v{t}, 8, v{t}
        v_and_b32 v{t+5}, 1, v{t+5}
        v_lshl_or_b32 v{t+4}, v{t+5}, 1, v{t+4}
        v_lshl_or_b32 v{t+4}, v{t+3}, 2, v{t+4} ; f
        s_lshl_b32 {sT0}, {sW}, 1
        v_xor_b32 v{t+4}, {sT0}, v{t+4}
        v_lshl_add_u32 v{t}, v{t+4}, 5, v{t}
        v_and_b32 v{t+2}, 3, v{t+2}
        v_lshl_add_u32 v{t}, v{t+2}, 3, v{t}
        v_add_u32 v{t}, {base}, v{t}
        v_xor_b32 v{t+1}, 32, v{t}
        ''')
    def trq(t, kq, abase):
        for b in range(2):
            for tau in range(4):
                a(f'ds_read_b64_tr_b16 {ar(abase + 16*kq + 8*b + 2*tau, 2)}, v{t+b} offset:{kq*16384 + (tau>>1)*8192 + (tau&1)*512}')
    def butterfly(A):
        for k in range(4): a(f'v_permlane32_swap_b32 v{A+k}, v{A+4+k}')
        a(f'v_pk_add_f32 {vr(A,2)}, {vr(A,2)}, {vr(A+4,2)}')
        a(f'v_pk_add_f32 {vr(A+2,2)}, {vr(A+2,2)}, {vr(A+6,2)}')
        for k in range(2): a(f'v_permlane16_swap_b32 v{A+k}, v{A+2+k}')
        a(f'v_pk_add_f32 {vr(A,2)}, {vr(A,2)}, {vr(A+2,2)}')
        dpp('v_add_f32', A, A, 'row_ror:8'); dpp('v_add_f32', A+1, A+1, 'row_ror:8')
    def dumpstamps(slot):
        if not P['stamps']: return
        a('s_waitcnt lgkmcnt(0)')
        a('v_mov_b32 v26, 0')
        for k in range(16): a(f'v_writelane_b32 v26, s{64+2*k}, {k}')
        a('v_mbcnt_lo_u32_b32 v27, -1, 0\nv_mbcnt_hi_u32_b32 v27, -1, v27\nv_lshlrev_b32 v27, 2, v27')
        a(f's_lshl_b32 {sT0}, {slot}, 6\ns_add_u32 {sT0}, {sT0}, {sDbg}')
        a(f's_mov_b64 exec, 0xffff\nbuffer_store_dword v26, v27, {WS}, {sT0} offen\ns_mov_b64 exec, -1')

    a(f'''
    s_cmp_ge_u32 s2, 256
    s_cbranch_scc1 EXIT
    s_and_b32 {sSet}, s2, 1
    s_mul_i32 {sT0}, {sSet}, 40
    s_add_u32 {sT0}, {sT0}, 8
    s_load_dwordx8 s[84:91], s[0:1], {sT0}
    s_load_dwordx2 s[92:93], s[0:1], 96
    s_load_dwordx2 s[8:9], s[0:1], 0
    s_load_dwordx2 s[12:13], s[0:1], 80
    v_lshrrev_b32 v1, 6, v0
    v_and_b32 v63, 63, v0
    v_readfirstlane_b32 {sW}, v1
    v_mov_b32 {vZ}, 0
    v_lshlrev_b32 {vFw}, 2, v1
    ds_write_b32 {vFw}, {vZ}
    s_and_b32 {sJ}, s2, 7
    s_lshr_b32 {sG}, {sJ}, 1
    s_lshr_b32 {sI}, s2, 3
    s_xor_b32 {sI}, {sI}, {P['ixor']}
    s_lshr_b32 {sRb}, {sI}, 3
    s_and_b32 {sCb}, {sI}, 7
    s_mov_b32 {sBud}, {P['budget']}
    s_cmp_ge_u32 {sW}, 4
    s_cbranch_scc1 LOADER
    ''')
    if P['stamps'] or P['dbgtime']: a('s_memrealtime s[94:95]')
    if P['dbgtime']: a('s_load_dwordx2 s[64:65], s[0:1], 88')
    stamp(0)
    L_, N_, G4, C_, B3, T = 'v63', 'v62', 'v61', 'v60', 'v59', 'v58'
    a(f'''
    ds_write_b32 {vZ}, {vZ} offset:{FM}
    s_mov_b32 {sLo}, 0x3f80
    s_mov_b32 {sHi}, 0x3f800000
    s_mov_b32 {sOne2}, 0x3f803f80
    v_mov_b32 v57, {sOne2}
    s_and_b32 {sT0}, {sW}, 1
    s_lshl_b32 {sT0}, {sT0}, 8
    v_lshl_add_u32 {T}, {L_}, 2, {sT0}
    ds_write_b32 {T}, v57 offset:{ONES}
    v_and_b32 {N_}, 15, {L_}
    v_lshrrev_b32 {G4}, 4, {L_}
    v_and_b32 {C_}, 7, {L_}
    v_bfe_u32 {B3}, {L_}, 3, 1
    v_lshrrev_b32 {T}, 3, {L_}
    v_lshlrev_b32 {vMl}, 4, {T}
    v_lshlrev_b32 {vG}, 8, {T}
    v_lshl_add_u32 {vG}, {C_}, 4, {vG}
    v_lshlrev_b32 {vRl}, 4, {C_}
    v_lshl_add_u32 {vRl}, {G4}, 2, {vRl}
    v_lshl_add_u32 {vRs}, {B3}, 13, {vRl}
    v_and_b32 {T}, 1, {G4}
    v_lshlrev_b32 {vABs}, 13, {T}
    v_lshl_add_u32 {vABs}, {N_}, 2, {vABs}
    s_waitcnt lgkmcnt(0)
    s_add_u32 s4, s92, 0x1fffff
    s_addc_u32 s5, s93, 0
    s_and_b32 s4, s4, 0xffe00000
    s_mov_b32 s6, 0x400000
    s_mov_b32 s7, 0x00020000
    s_mov_b32 s10, 2048
    s_mov_b32 s11, 0x00020000
    s_mov_b32 s14, 2048
    s_mov_b32 s15, 0x00020000
    ''')
    if 'nocomp' in P['exp']:
        a(f's_barrier\nv_mov_b32 {vSeq}, 2'); flag(); a('s_waitcnt lgkmcnt(0)\ns_endpgm')
    a(f'''
    s_lshl_b32 {sT3}, {sJ}, 18
    s_add_u32 {sT3}, {sT3}, {GRP}
    s_lshl_b32 {sT2}, {sSet}, 17
    s_add_u32 {sT2}, {sT2}, {CROSS}
    s_lshr_b32 {sT0}, {sCb}, 1
    s_lshl_b32 {sT0}, {sT0}, 14
    s_add_u32 {sABs}, {sT2}, {sT0}
    s_and_b32 {sT0}, {sCb}, 1
    s_lshl_b32 {sT0}, {sT0}, 12
    s_add_u32 {sABs}, {sABs}, {sT0}
    s_lshl_b32 {sT0}, {sG}, 2
    s_add_u32 {sT0}, {sT0}, {sRb}
    s_lshl_b32 {sT0}, {sT0}, 2
    s_add_u32 {sT0}, {sT0}, {sW}
    s_lshl_b32 {sT0}, {sT0}, 6
    s_add_u32 {sABs}, {sABs}, {sT0}
    s_lshl_b32 {sXo}, {sRb}, 2
    s_add_u32 {sXo}, {sXo}, {sW}
    s_lshl_b32 {sXo}, {sXo}, 7               ; rb*512 + w*128
    s_add_u32 {sRs}, {sT2}, {sXo}
    s_add_u32 {sRs}, {sRs}, 0x10000
    s_lshl_b32 {sT0}, {sRb}, 1
    s_cmp_eq_u32 {sT0}, {sCb}
    s_cselect_b32 {sPub}, 1, 0
    s_cmp_eq_u32 {sG}, 0
    s_cselect_b32 {sPub}, {sPub}, 0
    ''')
    def gclear(o, sc):
        o(f'buffer_store_dwordx4 v[52:55], v50, {WS}, s90 offen{sc}')
        o(f'buffer_store_dwordx2 v[52:53], v48, {WS}, s91 offen{sc}')
    a(f'''
    v_mov_b32 v52, -1
    v_mov_b32 v53, -1
    v_mov_b32 v54, -1
    v_mov_b32 v55, -1
    v_lshrrev_b32 v51, 5, {L_}
    v_and_b32 v47, 31, {L_}
    s_cmp_lg_u32 {sW}, 0
    s_cbranch_scc1 CLR0
    buffer_load_dword v56, off, {WS}, 0 sc1
    v_and_b32 v50, 1, {G4}
    v_lshlrev_b32 v50, 13, v50
    v_lshl_add_u32 v50, v51, 18, v50
    v_lshl_add_u32 v50, {N_}, 4, v50
    buffer_store_dwordx4 v[52:55], v50, {WS}, {sABs} offen sc1
    ''')
    a.label('CLR0')
    a(f'''
    s_sub_u32 {sT0}, {sW}, 1
    s_cmp_lt_u32 {sT0}, 2
    s_cselect_b32 {sT1}, {sPub}, 0
    s_cmp_eq_u32 {sT1}, 0
    s_cbranch_scc1 CLR1
    s_lshl_b32 {sT0}, {sT0}, 18
    s_add_u32 {sT0}, {sT0}, {sRs}
    s_lshl_b32 {sT1}, {sW}, 7
    s_sub_u32 {sT0}, {sT0}, {sT1}
    v_lshlrev_b32 v50, 13, v51
    v_lshl_add_u32 v50, v47, 4, v50
    buffer_store_dwordx4 v[52:55], v50, {WS}, {sT0} offen sc1
    ''')
    a.label('CLR1')
    a(f'''
    v_mul_u32_u24 v50, {USE}, v51
    v_lshl_add_u32 v50, v47, 4, v50
    s_lshl_b32 s90, {sI}, 2
    s_add_u32 s90, s90, {sW}
    s_lshl_b32 s90, s90, 9
    s_add_u32 s90, s90, {sT3}
    s_add_u32 s90, s90, {oCO}
    v_lshlrev_b32 v48, 3, {L_}
    s_mul_i32 s91, {sW}, {USE}
    s_lshl_b32 {sT1}, {sI}, 9
    s_cmp_lt_u32 {sW}, 3
    s_cbranch_scc1 CLR2
    v_and_b32 v48, 1, {G4}
    v_mul_u32_u24 v48, {USE}, v48
    v_lshl_add_u32 v48, {N_}, 3, v48
    s_mov_b32 s91, {oST}
    s_lshl_b32 {sT1}, {sI}, 7
    ''')
    a.label('CLR2')
    a(f'''
    s_add_u32 s91, s91, {sT1}
    s_add_u32 s91, s91, {sT3}
    ''')
    if P['pre'] == 1:
        a(f'buffer_load_dwordx4 v[38:41], v50, {WS}, s90 offen sc1\nbuffer_load_dwordx2 v[36:37], v48, {WS}, s91 offen sc1')
    gclear(a, P['clr'])
    if P['pre'] == 2:
        a(f'buffer_load_dwordx4 v[38:41], v50, {WS}, s90 offen sc1\nbuffer_load_dwordx2 v[36:37], v48, {WS}, s91 offen sc1')
    a(f'''
    v_lshlrev_b32 v46, 5, {L_}
    v_and_b32 v49, 63, {vRl}
    v_lshrrev_b32 v49, 1, v49
    v_and_b32 v45, 64, {vRl}
    v_add_u32 v49, v49, v45
    buffer_load_dwordx4 v[26:29], v46, {XS}, 0 offen
    buffer_load_dwordx4 v[30:33], v46, {XS}, 0 offen offset:16
    buffer_load_ushort v34, v49, {XS}, {sXo} offen
    buffer_load_ushort v35, v49, {XS}, {sXo} offen offset:32
    ''')
    a(f'''
    v_lshrrev_b32 {vXw}, 1, {C_}
    v_lshlrev_b32 {vXw}, 5, {vXw}
    v_and_b32 {T}, 1, {G4}
    v_lshl_add_u32 {vXw}, {T}, 4, {vXw}
    v_and_b32 {T}, 1, {C_}
    v_lshl_add_u32 {vXw}, {T}, 3, {vXw}
    v_lshrrev_b32 {T}, 1, {G4}
    v_lshl_add_u32 {vXw}, {T}, 2, {vXw}
    s_lshl_b32 {sT0}, {sW}, 7
    s_add_u32 {sT0}, {sT0}, {XB}
    v_add_u32 {vXw}, {sT0}, {vXw}
    v_and_b32 v57, 1, {L_}
    v_lshlrev_b32 {vXr}, 5, {G4}
    v_lshl_add_u32 {vXr}, v57, 4, {vXr}
    v_lshl_add_u32 {vXr}, {B3}, 9, {vXr}
    v_add_u32 {vXr}, {XB}, {vXr}
    v_mov_b32 {vIdx}, 0xaaaaaaaa
    v_mul_lo_u32 {vIdx}, {vIdx}, v57
    v_add_u32 {vIdx}, 0x44444444, {vIdx}
    v_mul_u32_u24 {vBQs}, {oCS}, v51
    v_lshl_add_u32 {vBQs}, v47, 2, {vBQs}
    v_lshlrev_b32 {vSTl}, 3, {N_}
    v_lshlrev_b32 {vBQl}, 11, v51
    v_lshl_add_u32 {vBQl}, v47, 4, {vBQl}
    v_and_b32 {T}, 1, {G4}
    v_mul_u32_u24 {vQw}, 1152, {T}
    v_bfe_u32 {T}, {L_}, 2, 2
    v_mul_u32_u24 {T}, 288, {T}
    v_add_u32 {vQw}, {vQw}, {T}
    v_lshl_add_u32 {vQw}, v51, 5, {vQw}
    v_and_b32 {T}, 3, {L_}
    v_lshl_add_u32 {vQw}, {T}, 2, {vQw}
    s_lshl_b32 {sT0}, {sW}, 6
    s_add_u32 {sT0}, {sT0}, {QB}
    v_add_u32 {vQw}, {sT0}, {vQw}
    v_mul_u32_u24 {vQr}, 288, {G4}
    v_lshl_add_u32 {vQr}, {N_}, 4, {vQr}
    v_add_u32 {vQr}, {QB}, {vQr}
    v_lshlrev_b32 {vMXr}, 5, {G4}
    v_add_u32 {vMXr}, {MX}, {vMXr}
    v_lshl_add_u32 {vMXw}, {B3}, 4, {vMXr}
    v_add_u32 {vMXw}, {vMXw}, {vFw}
    v_mul_u32_u24 {vPw}, 288, {B3}
    v_lshl_add_u32 {vPw}, {G4}, 6, {vPw}
    v_lshl_add_u32 {vPw}, v57, 4, {vPw}
    v_bfe_u32 {T}, {L_}, 1, 2
    v_lshl_add_u32 {vPw}, {T}, 2, {vPw}
    s_mul_i32 {sT0}, {sW}, 576
    s_add_u32 {sT0}, {sT0}, {PB}
    v_add_u32 {vPw}, {sT0}, {vPw}
    v_lshlrev_b32 {vMs}, 8, {G4}
    v_lshl_add_u32 {vMs}, v57, 7, {vMs}
    v_and_b32 {vLs}, 14, {L_}
    v_lshlrev_b32 {vLs}, 6, {vLs}
    v_lshlrev_b32 {vCOs}, 14, {G4}
    v_lshl_add_u32 {vCOs}, {N_}, 2, {vCOs}
    v_mov_b32 {vSeq}, 1
    ''')
    zero(CS, 4)
    a(f'''
    s_lshl_b32 {sT0}, {sRb}, 14
    s_lshr_b32 {sT1}, {sW}, 1
    s_lshl_b32 {sA}, {sT1}, 12
    s_add_u32 {sA}, {sA}, {sT0}
    s_and_b32 {sT0}, {sW}, 1
    s_lshl_b32 {sT0}, {sT0}, 7               ; (w&1)*128
    s_add_u32 {sA}, {sA}, {sT0}
    s_add_u32 {sA}, {sA}, {sT2}
    s_add_u32 {sA}, {sA}, {P['copy']*8192 - 0x20000 & 0xffffffff}
    s_add_u32 {sRl}, {sRs}, {P['copy']*8192 - 0x20000 & 0xffffffff}
    s_lshl_b32 {sCOl}, {sRb}, 1
    s_add_u32 {sCOl}, {sCOl}, {sT1}
    s_lshl_b32 {sMl}, {sCOl}, 7
    s_add_u32 {sMl}, {sMl}, {sT3}
    s_add_u32 {sMl}, {sMl}, {oM}
    s_lshl_b32 {sCOl}, {sCOl}, 13
    s_add_u32 {sCOl}, {sCOl}, {sT0}
    s_add_u32 {sCOl}, {sCOl}, {sT3}
    s_add_u32 {sCOl}, {sCOl}, {oCO}
    s_add_u32 {sCOl2}, {sCOl}, 4096
    s_lshl_b32 {sBQs}, {sCb}, 11
    s_add_u32 {sBQs}, {sBQs}, {sXo}
    s_add_u32 {sBQs}, {sBQs}, {sT3}
    s_lshl_b32 {sSTl}, {sCb}, 7
    s_add_u32 {sSTl}, {sSTl}, {sT3}
    s_add_u32 {sSTl}, {sSTl}, {oST}
    s_lshr_b32 {sT0}, {sXo}, 4
    s_add_u32 {sSTs}, {sSTl}, {sT0}
    s_lshl_b32 {sBQl}, {sW}, 12
    s_add_u32 {sBQl}, {sBQl}, {sT3}
    s_add_u32 {sCSl}, {sBQl}, {oCS}
    s_lshl_b32 {sMs}, {sCb}, 2
    s_add_u32 {sMs}, {sMs}, {sRb}
    s_lshl_b32 {sMs}, {sMs}, 2
    s_add_u32 {sMs}, {sMs}, {sT3}
    s_add_u32 {sMs}, {sMs}, {oM}
    s_lshl_b32 {sCOs}, {sI}, 2
    s_add_u32 {sCOs}, {sCOs}, {sW}
    s_lshl_b32 {sCOs}, {sCOs}, 6
    s_add_u32 {sCOs}, {sCOs}, {sT3}
    s_add_u32 {sCOs}, {sCOs}, {oCO}
    s_add_u32 {sCOs2}, {sCOs}, 8192
    s_mov_b32 {sU}, 0
    s_lshl_b32 {sDbg}, s2, 3
    s_add_u32 {sDbg}, {sDbg}, {sW}
    s_lshl_b32 {sDbg}, {sDbg}, 8
    s_add_u32 {sDbg}, {sDbg}, {DBG}
    ''')
    set64(mFull, (1 << 64) - 1); set64(mLo32, 0xffffffff); set64(mM3, 0x0003000300030003)
    set64(m5555, 0x5555); set64(mL63, 1 << 63); set64(mB4, 0xffff0000ffff0000); set64(mOdd, 0xaaaaaaaaaaaaaaaa)
    a('s_barrier')
    a('s_waitcnt vmcnt(0)')
    flag()
    if P['pre'] == 3:
        a(f'buffer_load_dwordx4 v[60:63], v50, {WS}, s90 offen sc1\nbuffer_load_dwordx2 v[58:59], v48, {WS}, s91 offen sc1\ns_waitcnt vmcnt(0)')
    stamp(1)
    a(f'v_mov_b32 v37, {RG}\ns_cmp_lg_u32 {sW}, 0\ns_cbranch_scc1 NOHS')
    a(f'''
    v_readfirstlane_b32 {sT0}, v56
    s_getreg_b32 s89, hwreg(HW_REG_XCC_ID, 0, 4)
    s_mul_i32 {sTag}, {sT0}, 0x9e3779b1
    s_add_u32 {sTag}, {sTag}, 0x7f4a7c15
    v_mov_b32 v44, {sTag}
    v_mov_b32 v45, s89
    s_lshl_b32 {sT0}, {sJ}, 9
    s_add_u32 {sT0}, {sT0}, {RG}
    s_xor_b32 {sT1}, {sSet}, 1
    s_lshl_b32 {sT1}, {sT1}, 2
    s_add_u32 {sT1}, {sT1}, {sRb}
    s_lshl_b32 {sT1}, {sT1}, 9
    s_add_u32 {sT1}, {sT1}, {RX}
    v_mov_b32 v46, {sT1}
    v_mov_b32 {T}, {sT0}
    v_cndmask_b32 v46, v46, {T}, {mLo32}
    v_lshl_add_u32 v46, v47, 4, v46
    s_lshl_b32 {sT1}, {sI}, 4
    s_add_u32 {sT0}, {sT0}, {sT1}
    s_lshl_b32 {sT1}, {sSet}, 2
    s_lshr_b32 {sT2}, {sCb}, 1
    s_add_u32 {sT1}, {sT1}, {sT2}
    s_lshl_b32 {sT1}, {sT1}, 2
    s_add_u32 {sT1}, {sT1}, {sG}
    s_lshl_b32 {sT1}, {sT1}, 2
    s_add_u32 {sT1}, {sT1}, {sRb}
    s_lshl_b32 {sT1}, {sT1}, 1
    s_and_b32 {sT2}, {sCb}, 1
    s_add_u32 {sT1}, {sT1}, {sT2}
    s_lshl_b32 {sT1}, {sT1}, 4
    s_add_u32 {sT1}, {sT1}, {RX}
    v_mov_b32 v37, {sT0}
    v_writelane_b32 v37, {sT1}, 1
    ''')
    def waitsync(n):
        L = lab('HS')
        a.label(L)
        a(f'''
        ds_read_b128 v[38:41], {vZ} offset:{FS}
        s_waitcnt lgkmcnt(0)
        v_min3_u32 v38, v38, v39, v40
        v_min_u32 v38, v38, v41
        v_cmp_gt_u32 vcc, {n}, v38
        s_cbranch_vccnz {retry(L)}
        ''')
    waitsync(1)
    a(f'''
    s_mov_b64 exec, 3
    buffer_store_dwordx2 v[44:45], v37, {WS}, 0 offen sc1
    s_mov_b64 exec, -1
    ''')
    a.label('NOHS')
    if 'hsonly' in P['exp']:
        a(f'v_mov_b32 {vSeq}, 2'); flag(); a('s_waitcnt lgkmcnt(0)\ns_endpgm')
    a(f'v_mov_b32 {vSeq}, 2')
    a(f's_cmp_lg_u32 {sSet}, 0\ns_cbranch_scc1 NOX')
    a(f'v_lshl_or_b32 v42, v35, 16, v34')
    a(f'v_dot2_f32_bf16 v36, v26, {sOne2}, 0')
    for k in range(1, 8): a(f'v_dot2_f32_bf16 v36, v{26+k}, {sOne2}, v36')
    for c in ('row_ror:8', 'row_ror:4', 'row_ror:2', 'row_ror:1'): dpp('v_add_f32', 36, 36, c)
    dpp('v_add_f32', 36, 36, 'row_bcast:15', rm='0xa'); dpp('v_add_f32', 36, 36, 'row_bcast:31', rm='0xc')
    a(f'''
    v_mul_f32 v36, 0x3a800000, v36
    v_readlane_b32 {sT0}, v36, 63
    v_lshlrev_b32 v34, 16, v34
    v_lshlrev_b32 v35, 16, v35
    v_subrev_f32 v34, {sT0}, v34
    v_subrev_f32 v35, {sT0}, v35
    v_cvt_pk_bf16_f32 v43, v34, v35
    ds_write_b32 {vXw}, v43
    ''')
    a.label('NOX')
    traddr(26, LW)
    a('v_mov_b32 v36, v26')
    for kq in range(4):
        waitload(4*kq + 4, F)
        if kq == P['hsq']:
            a(f's_cmp_lg_u32 {sW}, 0\ns_cbranch_scc1 NOP1')
            a(f'buffer_load_dwordx2 v[40:41], v46, {WS}, 0 offen sc1')
            a.label('NOP1')
        trq(26, kq, 0)
    a('s_waitcnt lgkmcnt(0)')
    flag()
    stamp(2)
    a(f's_cmp_lg_u32 {sW}, 0\ns_cbranch_scc1 WM')
    a.label('HS2')
    ool.label('HS2R')
    ool(f'buffer_load_dwordx2 v[40:41], v46, {WS}, 0 offen sc1\ns_sub_u32 {sBud}, {sBud}, 1\ns_cbranch_scc0 HS2\ns_branch FAIL')
    a(f'''
    s_waitcnt vmcnt(0)
    v_subrev_u32 v40, {sTag}, v40
    v_cmp_lt_u32 vcc, 1, v40
    s_cbranch_vccnz HS2R
    v_cmp_ne_u32 vcc, s89, v41
    s_cmp_eq_u32 vcc_lo, 0
    s_cselect_b32 {sT0}, 2, 3
    v_mov_b32 v40, {sT0}
    ds_write_b32 {vZ}, v40 offset:{FM}
    ''')
    a.label('WM')
    a(f'''
    ds_read_b32 v56, {vZ} offset:{FM}
    s_waitcnt lgkmcnt(0)
    v_cmp_eq_u32 vcc, 0, v56
    s_cbranch_vccnz {retry('WM')}
    v_readfirstlane_b32 {sMode}, v56
    s_cmp_lg_u32 {sMode}, 2
    s_cbranch_scc1 SLOWCLR
    ''')
    a.label('WM2')
    a(f'v_mov_b32 {vTr}, v36')
    a(f's_mov_b32 {sLd}, 0')
    a(f's_cmp_lg_u32 {sSet}, 0\ns_cselect_b32 {sT0}, 0, {sPub}\ns_cmp_eq_u32 {sT0}, 0\ns_cbranch_scc1 NORES0')
    a(f'buffer_store_dword v42, {vRs}, {WS}, {sRs} offen sc1')
    a.label('NORES0')
    main = a; a = ool
    a.label('SLOWCLR')
    gclear(a, ' sc1')
    a(f'v_add_u32 {vSeq}, 1, {vSeq}\ns_waitcnt vmcnt(0)')
    flag()
    a(f's_cmp_lg_u32 {sW}, 0\ns_cbranch_scc1 SLOW2')
    tmp = Asm(); ool = tmp
    waitsync(3)
    a(f'''
    v_add_u32 v44, 1, v44
    s_mov_b64 exec, 1
    buffer_store_dwordx2 v[44:45], v37, {WS}, 0 offen sc1
    s_mov_b64 exec, {mLo32}
    ''')
    a.label('SLOW1')
    a(f'''
    buffer_load_dword v40, v46, {WS}, 0 offen sc1
    s_waitcnt vmcnt(0)
    v_cmp_ne_u32 vcc, v44, v40
    s_cbranch_vccnz {retry('SLOW1')}
    s_mov_b64 exec, -1
    v_mov_b32 v40, 1
    ds_write_b32 {vZ}, v40 offset:{FM}
    ''')
    a.label('SLOW2')
    a(f'''
    ds_read_b32 v56, {vZ} offset:{FM}
    s_waitcnt lgkmcnt(0)
    v_cmp_ne_u32 vcc, 1, v56
    s_cbranch_vccnz {retry('SLOW2')}
    s_mov_b32 {sMode}, 1
    s_branch WM2
    ''')
    a.lines += tmp.lines
    ool = a; a = main
    stamp(3)
    if 'wqonly' in P['exp']:
        waitload(48, F); a('s_endpgm')
    zero(44, 8)
    a(f's_mov_b64 {mBQ}, -1')
    a(f's_cmp_eq_u32 {sSet}, 0\ns_cbranch_scc1 AFTERA')
    a(f'v_add_u32 {vSeq}, 1, {vSeq}')
    for k in range(4): a(f'v_mov_b32 v{26+k}, {sOne2}')
    for kq in range(4):
        smf(44, 26, 16*kq); smf(48, 26, 16*kq + 8)
    a(f'''
    v_add_f32 v44, v44, v45
    v_add_f32 v48, v48, v49
    v_cndmask_b32 v44, v44, v48, {mB4}
    s_not_b64 exec, {mLo32}
    ''')
    gstore([f'buffer_store_dword v44, {vBQs}, {WS}, {sBQs} offen'])
    a(f's_mov_b64 exec, -1\ns_mov_b64 {mBQ}, {mLo32}')
    def csgather():
        L = lab('CSG')
        a.label(L)
        for r in range(4): a(f'buffer_load_dwordx4 {vr(26+4*r,4)}, {vBQl}, {WS}, {sCSl} offen offset:{512*r} sc1')
        a('s_waitcnt vmcnt(0)')
        for h in range(2):
            a(f'v_pk_add_f32 {vr(CS+2*h,2)}, {vr(26+2*h,2)}, {vr(30+2*h,2)}')
            a(f'v_pk_add_f32 {vr(34+2*h,2)}, {vr(34+2*h,2)}, {vr(38+2*h,2)}')
        for h in range(2): a(f'v_pk_add_f32 {vr(CS+2*h,2)}, {vr(CS+2*h,2)}, {vr(34+2*h,2)}')
        a(f'v_cmp_u_f32 vcc, v{CS}, v{CS+1}\nv_cmp_u_f32 {mT}, v{CS+2}, v{CS+3}\ns_nop 0\ns_or_b64 vcc, vcc, {mT}')
        a(f's_cbranch_vccnz {retry(L)}')
    csgather()
    if P['bgate']:
        a.label('BW')
        a(f's_mov_b32 {sNeed}, 0\ns_call_b64 {sRet}, LD')
        a(f's_cmp_ge_u32 {sLd}, {P["bgate"]}\ns_cbranch_scc1 LOOP')
        a(f'''
        s_mov_b64 exec, 1
        buffer_load_dword v26, {vG}, {WS}, {sA} offen sc1
        s_waitcnt vmcnt(0)
        v_cmp_eq_u32 vcc, -1, v26
        s_mov_b64 exec, -1
        s_cbranch_vccnz {retry('BW')}
        ''')

    a.label('LOOP')
    zero(44, 8)
    stamp(4)
    a.label('APOLL')
    a(f'''
    buffer_load_dwordx4 v[26:29], {vG}, {WS}, {sA} offen sc1
    buffer_load_dwordx4 v[30:33], {vG}, {WS}, {sA} offen offset:2048 sc1
    buffer_load_dword v42, {vRl}, {WS}, {sRl} offen sc1
    s_waitcnt vmcnt(2)
    ''')
    for k in range(4):
        a(f'v_lshlrev_b32 v{34+2*k}, 16, v{26+k}\nv_and_b32 v{35+2*k}, 0xffff0000, v{26+k}')
    a('s_waitcnt vmcnt(1)')
    for k in range(4):
        a(f'v_dot2_f32_bf16 v{34+2*k}, v{30+k}, {sLo}, v{34+2*k}\nv_dot2_f32_bf16 v{35+2*k}, v{30+k}, {sHi}, v{35+2*k}')
    a('s_waitcnt vmcnt(0)')
    a('v_lshlrev_b32 v52, 16, v42\nv_and_b32 v53, 0xffff0000, v42')
    butterfly(34)
    a(f'''
    v_pk_add_f32 v[34:35], v[34:35], v[52:53]
    v_cvt_pk_bf16_f32 v43, v34, v35
    ds_write_b32 {vXw}, v43
    v_cmp_u_f32 vcc, v34, v35
    s_cbranch_vccnz ARETRY
    ''')
    ool.label('ARETRY')
    ool(f's_sub_u32 {sBud}, {sBud}, 1\ns_cbranch_scc1 FAIL\ns_cmp_eq_u32 {sLd}, 6\ns_cbranch_scc1 APOLL')
    ool(f's_mov_b32 {sNeed}, 0\ns_call_b64 {sRet}, LD\ns_branch APOLL')
    flag()
    a(f's_cmp_eq_u32 {sU}, 2\ns_cbranch_scc1 FINAL')
    a(f's_cmp_eq_u32 {sPub}, 0\ns_cbranch_scc1 AFTERA')
    a(f'buffer_store_dword v43, {vRs}, {WS}, {sRs} offen sc1')
    a.label('AFTERA')
    stamp(5)
    def stats():
        a(f'v_dot2_f32_bf16 v60, v43, {sOne2}, 0\nv_dot2_f32_bf16 v61, v43, v43, 0')
        for c in ('quad_perm:[1,0,3,2]', 'quad_perm:[2,3,0,1]', 'row_half_mirror'):
            dpp('v_add_f32', 60, 60, c); dpp('v_add_f32', 61, 61, c)
        for c, rm in (('row_bcast:15', '0xa'), ('row_bcast:31', '0xc')):
            dpp('v_add_f32', 60, 60, c, rm=rm); dpp('v_add_f32', 61, 61, c, rm=rm)
        a(f's_mov_b64 exec, {mL63}')
        gstore([f'buffer_store_dwordx2 v[60:61], off, {WS}, {sSTs}'])
        a(f's_mov_b64 exec, {mFull}')
    sync([f'ds_read_b128 {vr(26+4*k,4)}, {vXr} offset:{128*k}' for k in range(4)], F, stats)
    for kq in range(4):
        a(f's_waitcnt lgkmcnt({3-kq})')
        smf(44, 26+4*kq, 16*kq); smf(48, 26+4*kq, 16*kq + 8)
    a(f'''
    v_add_f32 v44, v44, v45
    v_add_f32 v48, v48, v49
    v_cndmask_b32 v44, v44, v48, {mB4}
    s_mov_b64 exec, {mBQ}
    ''')
    gstore([f'buffer_store_dword v44, {vBQs}, {WS}, {sBQs} offen'])
    a(f's_mov_b64 exec, {mFull}')
    stamp(6)
    ld(1)
    a.label('BST')
    a(f'''
    buffer_load_dwordx2 v[26:27], {vSTl}, {WS}, {sSTl} offen sc1
    ''')
    zero(44, 8)
    a(f'''
    s_waitcnt vmcnt(0)
    v_cmp_u_f32 vcc, v26, v27
    s_cbranch_vccnz {retry('BST')}
    ''')
    def bloads(o):
        for r in range(4): o(f'buffer_load_dwordx4 {vr(28+4*r,4)}, {vBQl}, {WS}, {sBQl} offen offset:{512*r} sc1')
    bloads(a)
    stamp(7)
    for c in ('row_ror:8', 'row_ror:4', 'row_ror:2', 'row_ror:1'):
        dpp('v_add_f32', 26, 26, c); dpp('v_add_f32', 27, 27, c)
    SC = 128 ** -0.5 * 1.4426950408889634
    import struct
    fb = lambda x: hex(struct.unpack('<I', struct.pack('<f', x))[0])
    a(f'''
    v_mul_f32 v26, {fb(-1/1024)}, v26
    v_mov_b32 v58, {fb(1e-5)}
    v_fmac_f32 v58, {fb(1/1024)}, v27
    v_fma_f32 v58, -v26, v26, v58
    v_rsq_f32 v58, v58
    v_pk_mul_f32 v[60:61], {vr(CS,2)}, v[26:27] op_sel_hi:[1,0]
    v_pk_mul_f32 v[62:63], {vr(CS+2,2)}, v[26:27] op_sel_hi:[1,0]
    v_mul_f32 v58, {fb(SC)}, v58
    ''')
    a.label('BQ2')
    a('''
    s_waitcnt vmcnt(3)
    v_pk_add_f32 v[28:29], v[28:29], v[60:61]
    v_pk_add_f32 v[30:31], v[30:31], v[62:63]
    ''')
    for r in range(1, 4):
        a(f's_waitcnt vmcnt({3-r})')
        a(f'v_pk_add_f32 v[28:29], v[28:29], {vr(28+4*r,2)}\nv_pk_add_f32 v[30:31], v[30:31], {vr(30+4*r,2)}')
    rb_ = lab('RB')
    ool.label(rb_); bloads(ool); ool(f's_sub_u32 {sBud}, {sBud}, 1\ns_cbranch_scc0 BQ2\ns_branch FAIL')
    a(f'''
    v_pk_mul_f32 v[28:29], v[28:29], v[58:59] op_sel_hi:[1,0]
    v_pk_mul_f32 v[30:31], v[30:31], v[58:59] op_sel_hi:[1,0]
    v_cvt_pk_bf16_f32 v32, v28, v29
    v_cvt_pk_bf16_f32 v33, v30, v31
    v_cmp_u_f32 vcc, v28, v29
    v_cmp_u_f32 {mT}, v30, v31
    ds_write2_b32 {vQw}, v32, v33 offset1:4
    s_or_b64 vcc, vcc, {mT}
    s_cbranch_vccnz {rb_}
    ''')
    flag()
    stamp(8)
    sync([f'ds_read_b128 {vr(26+4*hf,4)}, {vQr} offset:{1152*hf}' for hf in range(2)], F)
    for hf in range(2):
        a(f's_waitcnt lgkmcnt({1-hf})')
        smf(44, 26+4*hf, 64 + 8*hf); smf(48, 26+4*hf, 80 + 8*hf)
    a('''
    v_add_f32 v34, v44, v45
    v_add_f32 v36, v46, v47
    v_add_f32 v35, v48, v49
    v_add_f32 v37, v50, v51
    v_max_f32 v38, v34, v35
    v_max_f32 v39, v36, v37
    ''')
    dpp('v_max_f32', 40, 38, 'row_ror:8', bm='0x3'); dpp('v_max_f32', 40, 39, 'row_ror:8', bm='0xc')
    for c in ('row_half_mirror', 'quad_perm:[1,0,3,2]', 'quad_perm:[2,3,0,1]'): dpp('v_max_f32', 40, 40, c)
    a(f'ds_write_b32 {vMXw}, v40')
    flag()
    sync([f'ds_read_b128 {vr(26+4*h,4)}, {vMXr} offset:{16*h}' for h in range(2)], F, lambda: zero(44, 8))
    a(f'''
    s_waitcnt lgkmcnt(1)
    v_max3_f32 v26, v26, v27, v28
    v_max_f32 v26, v26, v29
    s_waitcnt lgkmcnt(0)
    v_max3_f32 v30, v30, v31, v32
    v_max_f32 v30, v30, v33
    v_sub_f32 v34, v34, v26
    v_sub_f32 v35, v35, v26
    v_sub_f32 v36, v36, v30
    v_sub_f32 v37, v37, v30
    v_exp_f32 v34, v34
    v_exp_f32 v35, v35
    v_exp_f32 v36, v36
    v_exp_f32 v37, v37
    v_cvt_pk_bf16_f32 v38, v34, v35
    v_cvt_pk_bf16_f32 v39, v36, v37
    ds_write2_b32 {vPw}, v38, v39 offset1:8
    ''')
    flag()
    stamp(9)
    def pubm():
        x = lab('NM')
        a(f's_cmp_lg_u32 {sW}, 0\ns_cbranch_scc1 {x}')
        a(f'v_cndmask_b32 v40, v26, v30, {mOdd}\ns_mov_b64 exec, {mM3}')
        gstore([f'buffer_store_dword v40, {vMs}, {WS}, {sMs} offen'])
        a(f's_mov_b64 exec, {mFull}')
        a.label(x)
    sync([f'ds_read_b128 {vr(32+4*hf,4)}, {vQr} offset:{PB-QB + 1152*hf}' for hf in range(2)], F, lambda: (pubm(), ld(2)))
    for hf in range(2):
        a(f's_waitcnt lgkmcnt({1-hf})')
        smf(44, 32+4*hf, 96 + 16*hf); smf(48, 32+4*hf, 96 + 16*hf + 8)
    a(f's_cmp_lg_u32 {sW}, 1\ns_cbranch_scc1 NOL')
    a(f'v_dot2_f32_bf16 v40, v32, {sOne2}, 0')
    for k in range(1, 8): a(f'v_dot2_f32_bf16 v40, v{32+k}, {sOne2}, v40')
    dpp('v_add_f32', 40, 40, 'quad_perm:[1,0,3,2]')
    a('''
    v_mov_b32 v41, v40
    v_permlane16_swap_b32 v40, v41
    v_add_f32 v40, v40, v41
    v_mov_b32 v41, v40
    v_permlane32_swap_b32 v40, v41
    v_add_f32 v40, v40, v41
    ''')
    a(f's_mov_b64 exec, {m5555}')
    gstore([f'buffer_store_dword v40, {vLs}, {WS}, {sMs} offen offset:{oL-oM}'])
    a(f's_mov_b64 exec, {mFull}')
    a.label('NOL')
    a('''
    v_add_f32 v44, v44, v45
    v_add_f32 v46, v46, v47
    v_add_f32 v48, v48, v49
    v_add_f32 v50, v50, v51
    v_cvt_pk_bf16_f32 v44, v44, v48
    v_cvt_pk_bf16_f32 v46, v46, v50
    ''')
    gstore([f'buffer_store_dword v44, {vCOs}, {WS}, {sCOs} offen', f'buffer_store_dword v46, {vCOs}, {WS}, {sCOs2} offen'])
    stamp(10)
    ld(0)
    a.label('CM')
    a(f'''
    buffer_load_dwordx4 v[26:29], {vMl}, {WS}, {sMl} offen sc1
    s_waitcnt vmcnt(0)
    v_cmp_u_f32 vcc, v26, v27
    v_cmp_u_f32 {mT}, v28, v29
    s_nop 0
    s_or_b64 vcc, vcc, {mT}
    s_cbranch_vccnz {retry('CM')}
    ''')
    def cloads(o):
        o(f'buffer_load_dwordx4 v[30:33], {vMl}, {WS}, {sMl} offen offset:{oL-oM} sc1')
        for k in range(4):
            o(f'buffer_load_dwordx4 {vr(34+4*k,4)}, {vG}, {WS}, {(sCOl, sCOl2)[k>>1]} offen offset:{2048*(k&1)} sc1')
    cloads(a)
    stamp(11)
    a('v_max3_f32 v50, v26, v27, v28\nv_max_f32 v50, v50, v29')
    dpp('v_max_f32', 50, 50, 'row_ror:8'); dpp('v_max_f32', 50, 50, 'row_bcast:15', rm='0xa'); dpp('v_max_f32', 50, 50, 'row_bcast:31', rm='0xc')
    a(f'v_readlane_b32 {sT0}, v50, 63')
    for k in range(4): a(f'v_subrev_f32 v{26+k}, {sT0}, v{26+k}')
    for k in range(4): a(f'v_exp_f32 v{26+k}, v{26+k}')
    for k in range(4): a(f'v_lshrrev_b32 v{50+k}, 16, v{26+k}')
    for k in range(4): a(f'v_and_b32 v{26+k}, 0xffff0000, v{26+k}')
    a.label('CO2')
    a('''
    s_waitcnt vmcnt(4)
    v_mul_f32 v54, v26, v30
    v_fmac_f32 v54, v27, v31
    v_fmac_f32 v54, v28, v32
    v_fmac_f32 v54, v29, v33
    ''')
    extra = [lambda: dpp('v_add_f32', 54, 54, 'row_ror:8'), lambda: dpp('v_add_f32', 54, 54, 'row_bcast:15', rm='0xa'),
             lambda: dpp('v_add_f32', 54, 54, 'row_bcast:31', rm='0xc'), lambda: a(f'v_readlane_b32 {sT1}, v54, 63'),
             lambda: a(f'v_rcp_f32 v54, {sT1}')]
    for k in range(4):
        a(f's_waitcnt vmcnt({3-k})')
        for d in range(4):
            c0, c1 = ('0', '0') if k == 0 else (f'v{56+2*d}', f'v{57+2*d}')
            a(f'v_dot2_f32_bf16 v{56+2*d}, v{34+4*k+d}, v{50+k}, {c0}')
            a(f'v_dot2_f32_bf16 v{57+2*d}, v{34+4*k+d}, v{26+k}, {c1}')
            if d % 2 == 1 and extra: extra.pop(0)()
    rc_ = lab('RC')
    ool.label(rc_); cloads(ool); ool(f's_sub_u32 {sBud}, {sBud}, 1\ns_cbranch_scc0 CO2\ns_branch FAIL')
    butterfly(56)
    a(f'''
    v_pk_mul_f32 v[56:57], v[56:57], v[54:55] op_sel_hi:[1,0]
    v_cvt_pk_bf16_f32 v58, v56, v57
    ds_write_b32 {vXw}, v58 offset:{OB-XB}
    v_cmp_u_f32 vcc, v56, v57
    s_cbranch_vccnz {rc_}
    ''')
    flag()
    stamp(12)
    sync([f'ds_read_b128 {vr(26+4*k,4)}, {vXr} offset:{OB-XB + 128*k}' for k in range(4)], F, lambda: (zero(44, 8), ld(6)))
    for kq in range(4):
        a(f's_waitcnt lgkmcnt({3-kq})')
        smf(44, 26+4*kq, 128 + 16*kq); smf(48, 26+4*kq, 128 + 16*kq + 8)
    a.label('S3T')
    a(f'''
    v_add_f32 v44, v44, v45
    v_add_f32 v48, v48, v49
    v_cvt_pk_bf16_f32 v44, v44, v48
    s_mov_b64 exec, {mLo32}
    buffer_store_dword v44, {vABs}, {WS}, {sABs} offen sc1
    s_mov_b64 exec, {mFull}
    ''')
    stamp(13)
    dumpstamps(sU)
    a(f's_cmp_lg_u32 {sU}, 0\ns_cbranch_scc1 LAST')
    for s in (sA, sRl, sRs, sABs): a(f's_add_u32 {s}, {s}, 0x40000')
    for s in (sBQs, sSTs, sSTl, sBQl, sMs, sMl, sCOs, sCOs2, sCOl, sCOl2): a(f's_add_u32 {s}, {s}, {USE}')
    a(f's_mov_b32 {sU}, 1\ns_mov_b64 {mBQ}, {mLo32}')
    a(f's_cmp_lg_u32 {sSet}, 0\ns_cbranch_scc1 LOOP')
    csgather()
    a('s_branch LOOP')
    a.label('LAST')
    a(f'''
    s_cmp_lg_u32 {sSet}, 0
    s_cbranch_scc1 EXIT
    s_cmp_eq_u32 {sPub}, 0
    s_cbranch_scc1 EXIT
    s_add_u32 {sA}, {sA}, 0x40000
    s_add_u32 {sRl}, {sRl}, 0x40000
    s_mov_b32 {sU}, 2
    v_and_b32 v49, 63, {vRl}
    v_lshrrev_b32 v49, 1, v49
    v_and_b32 v48, 64, {vRl}
    v_add_u32 v49, v49, v48
    s_branch APOLL
    ''')
    a.label('FINAL')
    a(f'''
    buffer_store_short v43, v49, {OS}, {sXo} offen
    buffer_store_short_d16_hi v43, v49, {OS}, {sXo} offen offset:32
    s_cmp_lg_u32 {sXo}, 0
    s_cbranch_scc1 FIN2
    v_mov_b32 v26, {sTag}
    s_mov_b64 exec, 1
    buffer_store_dword v26, off, {WS}, 0 sc1
    s_mov_b64 exec, -1
    ''')
    a.label('FIN2')
    if P['dbgtime']:
        a(f'''
        s_memrealtime s[68:69]
        s_mov_b32 s66, 256
        s_mov_b32 s67, 0x00020000
        s_lshr_b32 {sT0}, {sXo}, 4
        s_waitcnt lgkmcnt(0)
        v_mov_b32 v26, s94
        v_mov_b32 v27, s68
        s_mov_b64 exec, 1
        buffer_store_dwordx2 v[26:27], off, s[64:67], {sT0}
        ''')
    stamp(5)
    dumpstamps(sU)
    a('s_endpgm')
    a.label('LD')
    a(f'ds_read_b128 v[60:63], {vZ} offset:{FL}')
    for k in range(5, 0, -1): a(f's_cmp_eq_u32 {sLd}, {k}\ns_cbranch_scc1 LP{k}')
    for k in range(6):
        a.label(f'LP{k}')
        a('s_waitcnt lgkmcnt(0)\nv_min3_i32 v60, v60, v61, v62\nv_min_i32 v60, v60, v63')
        a.label(f'LQ{k}')
        a(f'v_cmp_gt_i32 vcc, {24 if k == 0 else 28 + 4*k}, v60\ns_cbranch_vccnz LDW')
        if k == 0:
            a(f'''
            v_mbcnt_lo_u32_b32 v61, -1, 0
            v_mbcnt_hi_u32_b32 v61, -1, v61
            v_and_b32 v62, 15, v61
            v_lshrrev_b32 v61, 4, v61
            v_xor_b32 v61, v61, v62
            v_lshlrev_b32 v61, 4, v61
            v_lshl_add_u32 v52, v62, 8, v61
            s_lshl_b32 {sT0}, {sW}, 13
            s_add_u32 {sT0}, {sT0}, {LK}
            v_add_u32 v52, {sT0}, v52
            v_xor_b32 v53, 64, v52
            v_xor_b32 v61, 0x80, v52
            v_xor_b32 v62, 0xc0, v52
            ''')
            for b in range(2):
                for hf in range(2):
                    for q in range(2):
                        a(f'ds_read_b128 {ar(64 + 16*b + 8*hf + 4*q, 4)}, v{(52, 53, 61, 62)[2*hf + q]} offset:{4096*b}')
        elif k == 1:
            a(f'v_add_u32 v52, {LV - LW}, {vTr}\nv_xor_b32 v53, 32, v52')
            for hf in range(2): trq(52, hf, 96)
        else:
            a(f'v_mov_b32 v52, {vTr}\nv_xor_b32 v53, 32, {vTr}')
            trq(52, k - 2, 128)
        a(f's_mov_b32 {sLd}, {k+1}')
        if k < 5: a(f's_branch LQ{k+1}')
    a.label('LDR')
    a(f's_waitcnt lgkmcnt(0)\ns_setpc_b64 {sRet}')
    a.label('LDW')
    a(f's_cmp_ge_u32 {sLd}, {sNeed}\ns_cbranch_scc1 LDR\ns_sub_u32 {sBud}, {sBud}, 1\ns_cbranch_scc0 LD\ns_branch FAIL')

    a.label('LOADER')
    sWl, sI0, sOff, sOff2, sM, sCnt, sEnd = 's24', 's25', 's26', 's27', 's28', 's29', 's30'
    vWq, vK, vV, vWo, vC = 'v2', 'v3', 'v4', 'v5', 'v6'
    if P['stamps']: a('s_memrealtime s[94:95]')
    stamp(0)
    a(f'''
    s_sub_u32 {sWl}, {sW}, 4
    s_lshr_b32 {sI0}, {sWl}, 1
    s_lshl_b32 {sI0}, {sI0}, 2
    s_and_b32 {sT0}, {sWl}, 1
    s_add_u32 {sI0}, {sI0}, {sT0}
    v_lshrrev_b32 v10, 4, v63
    v_and_b32 v11, 15, v63
    v_and_b32 v12, 1, v10
    s_lshl_b32 {sT0}, {sWl}, 2
    v_lshl_or_b32 v12, v12, 1, {sT0}
    v_xor_b32 v12, v12, v11
    v_lshlrev_b32 v12, 4, v12
    v_add_u32 v13, {sT0}, v10
    v_xor_b32 v13, v13, v11
    v_lshlrev_b32 v13, 4, v13
    s_lshl_b32 {sT0}, {sRb}, 6
    s_add_u32 {sT0}, {sT0}, {sI0}
    s_lshl_b32 {sT1}, {sT0}, 15
    s_lshl_b32 {sT2}, {sG}, 3
    s_add_u32 {sT2}, {sT2}, {sCb}
    s_lshl_b32 {sT2}, {sT2}, 8
    s_add_u32 {sT1}, {sT1}, {sT2}
    v_lshl_add_u32 {vWq}, v10, 13, v12
    v_add_u32 {vWq}, {sT1}, {vWq}
    s_lshl_b32 {sT1}, {sG}, 8
    s_add_u32 {sT0}, {sT0}, {sT1}
    s_lshl_b32 {sT0}, {sT0}, 13
    s_lshl_b32 {sT1}, {sCb}, 8
    s_add_u32 {sT0}, {sT0}, {sT1}
    v_lshl_add_u32 {vWo}, v10, 11, v12
    v_add_u32 {vWo}, {sT0}, {vWo}
    s_lshl_b32 {sT0}, {sG}, 24
    s_lshl_b32 {sT1}, {sI}, 15
    s_add_u32 {sT0}, {sT0}, {sT1}
    s_add_u32 {sT0}, {sT0}, {61440*256}
    s_lshl_b32 {sT1}, {sI0}, 10
    s_add_u32 {sT1}, {sT1}, {sT0}
    v_lshl_add_u32 {vV}, v10, 8, v12
    v_add_u32 {vV}, {sT1}, {vV}
    s_lshl_b32 {sT1}, {sWl}, 10
    s_add_u32 {sT1}, {sT1}, {sT0}
    v_lshl_add_u32 {vK}, v10, 8, v13
    v_add_u32 {vK}, {sT1}, {vK}
    s_cmp_eq_u32 {sSet}, 0
    s_cselect_b32 {sCnt}, {-P['WA']}, {-P['WB']}
    s_cselect_b64 vcc, 0, -1
    s_waitcnt lgkmcnt(0)
    s_mov_b32 s8, s88
    s_mov_b32 s9, s89
    s_mov_b32 s10, 0x800000
    s_mov_b32 s11, 0x00020000
    s_mov_b32 s12, s84
    s_mov_b32 s13, s85
    s_mov_b32 s14, 0x4000000
    s_mov_b32 s15, 0x00020000
    s_mov_b32 s16, s86
    s_mov_b32 s17, s87
    s_mov_b32 s18, 0x4000000
    s_mov_b32 s19, 0x00020000
    s_mov_b32 s20, s90
    s_mov_b32 s21, s91
    s_mov_b32 s22, 0x800000
    s_mov_b32 s23, 0x00020000
    ''')
    if P['seg64']:
        a(f'''
        v_lshrrev_b32 v10, 2, v63
        v_and_b32 v11, 3, v63
        v_lshlrev_b32 v11, 4, v11
        s_lshl_b32 {sT0}, {sI}, 6
        v_add_u32 v11, {sT0}, v11
        s_lshl_b32 {sT0}, {sWl}, 5
        v_add_u32 v10, {sT0}, v10
        s_lshl_b32 {sT1}, {sG}, 11
        v_lshl_add_u32 {vWq}, v10, 13, v11
        v_add_u32 {vWq}, {sT1}, {vWq}
        s_lshl_b32 {sT1}, {sG}, 21
        v_lshl_add_u32 {vWo}, v10, 11, v11
        v_add_u32 {vWo}, {sT1}, {vWo}
        ''')
    assert P['WB'] <= P['WA']
    if P['stamps']:
        a(f'''
        s_add_u32 s4, s92, 0x1fffff
        s_addc_u32 s5, s93, 0
        s_and_b32 s4, s4, 0xffe00000
        s_mov_b32 s6, 0x400000
        s_mov_b32 s7, 0x00020000
        s_lshl_b32 {sDbg}, s2, 3
        s_add_u32 {sDbg}, {sDbg}, {sW}
        s_lshl_b32 {sDbg}, {sDbg}, 8
        s_add_u32 {sDbg}, {sDbg}, {DBG}
        ''')
    stamp(1)
    if 'onlyA' in P['exp']:
        a(f's_cmp_eq_u32 {sSet}, 0\ns_cbranch_scc1 LGO\ns_barrier\ns_endpgm'); a.label('LGO')
    def lloop(srd, va, mbase_s, mbase, d2, m2, dstep, mstep, n, first=False, nt='nt'):
        a(f's_lshl_b32 {sM}, {mbase_s}, 10\ns_add_u32 {sM}, {sM}, {mbase}\ns_mov_b32 {sOff}, 0')
        def body(bar):
            x = lab('LS')
            a(f'''
            s_mov_b32 m0, {sM}
            s_add_u32 {sOff2}, {sOff}, {d2}
            buffer_load_dwordx4 {va}, {srd}, {sOff} offen {nt} lds
            s_add_u32 m0, {sM}, {m2}
            s_add_u32 {sOff}, {sOff}, {dstep}
            buffer_load_dwordx4 {va}, {srd}, {sOff2} offen {nt} lds
            s_add_u32 {sM}, {sM}, {mstep}
            s_add_u32 {sCnt}, {sCnt}, 2
            v_mov_b32 {vC}, {sCnt}
            ''')
            if bar: a('s_barrier')
            if P['WB'] != P['WA']:
                a(f's_cbranch_vccz {x}\ns_waitcnt vmcnt({P["WB"]})')
                a.label(x)
            a(f's_waitcnt vmcnt({P["WA"]})\nds_write_b32 {vFw}, {vC}')
        if first: body(True)
        L = lab('LL')
        a.label(L)
        body(False)
        a(f's_cmp_lt_u32 {sOff}, {n*dstep}\ns_cbranch_scc1 {L}')
    if P['seg64']: lloop('s[8:11]', vWq, sI0, LW, 16*8192, 2048, 128*8192, 8192, 8, first=True, nt=P['wnt'])
    else: lloop('s[8:11]', vWq, sI0, LW, 0x10000, 2048, 0x40000, 8192, 8, first=True, nt=P['wnt'])
    stamp(2)
    lloop('s[12:15]', vK, sWl, LK, 4096, 4096, 8192, 8192, 4)
    stamp(3)
    lloop('s[16:19]', vV, sI0, LV, 2048, 2048, 8192, 8192, 4)
    stamp(4)
    a.label('LWC')
    a(f'''
    ds_read_b128 v[10:13], {vZ} offset:{FS}
    s_waitcnt lgkmcnt(0)
    v_min3_u32 v10, v10, v11, v12
    v_min_u32 v10, v10, v13
    v_cmp_gt_u32 {mT}, 2, v10
    s_nop 3
    s_cmp_lg_u32 s56, 0
    s_cbranch_scc1 {retry('LWC')}
    ''')
    stamp(5)
    if P['seg64']: lloop('s[20:23]', vWo, sI0, LW, 16*2048, 2048, 128*2048, 8192, 8, nt=P['wnt'])
    else: lloop('s[20:23]', vWo, sI0, LW, 0x4000, 2048, 0x10000, 8192, 8, nt=P['wnt'])
    for k in range(P['WA'] - 2, -1, -2):
        a(f'v_mov_b32 {vC}, {48-k}\ns_waitcnt vmcnt({k})\nds_write_b32 {vFw}, {vC}')
    stamp(6)
    if P['stamps']: a('s_memrealtime s[78:79]')
    dumpstamps(0)
    a('s_waitcnt lgkmcnt(0)')
    a.label('FAIL')
    a.label('EXIT')
    a('s_endpgm')
    lines = a.lines + ool.lines
    lines, n = hazard.fix(lines)
    body = '\n'.join(lines) + '\n'
    return body, n

HEADER = open('interleave_layers__sliding_block_cached__sliding_block_cached__decode.s.ref').read().split('; Override')[0]

def source(**kw):
    body, n = gen(**kw)
    return wrap(NAME, body, 256, 512, LDS, 256, 64, 13, header=HEADER), n

def variants(specs):
    for nm, kw in specs.items():
        src, n = source(**kw)
        build(src, NAME, 13, f'work/{nm}.co')
        open(f'work/{nm}.s', 'w').write(src)

if __name__ == '__main__':
    src, n = source()
    print('nops added', n, 'lines', src.count('\n'))
    build(src, NAME, 13, 'k.co')
    srcs, _ = source(stamps=True)
    build(srcs, NAME, 13, 'ks.co')
    if len(sys.argv) > 1: open(sys.argv[1], 'w').write(src)
```
